```python
import torch

def _softmax(x, axis=-1):
    return torch.softmax(x, dim=axis)
def _gelu(x):
    return torch.nn.functional.gelu(x, approximate="tanh")
def _silu(x):
    return torch.nn.functional.silu(x)
def _sigmoid(x):
    return torch.sigmoid(x)
def _layernorm(x, axis=-1, eps=1e-5):
    m = x.mean(dim=axis, keepdim=True)
    v = x.var(dim=axis, keepdim=True, unbiased=False)
    return (x - m) / torch.sqrt(v + eps)
def _scatter_add(tgt, idx, src, axis=0):
    return tgt.clone().index_add_(axis, idx, src)
def _segment_sum(src, seg, n):
    out = torch.zeros((n,) + src.shape[1:], dtype=src.dtype)
    return out.index_add_(0, seg, src)
def _pad(x, pw):
    flat = tuple(v for pair in reversed(pw) for v in pair)
    return torch.nn.functional.pad(x, flat)

kernel_name = 'parallel_sum__ssm_conv_s4__glu_gated_reglu__prompt'

def setup_inputs():

    _w = (lambda a: (lambda t: t.to(torch.bfloat16) if t.is_floating_point() else t)(torch.as_tensor(a)))
    def _A_setup():
        B, L, D, N = 1, 2048, 640, 128
        A_re = -(lambda _x: torch.exp(torch.as_tensor(_x)))((lambda *s: torch.randn(*s, dtype=torch.bfloat16) * 6.4)(D, N))
        A_im = torch.pi * (lambda *s: torch.randn(*s, dtype=torch.bfloat16) * 0.05)(D, N)
        B_re = (lambda *s: torch.randn(*s, dtype=torch.bfloat16) * 0.1)(D, N)
        B_im = (lambda *s: torch.randn(*s, dtype=torch.bfloat16) * 0.1)(D, N)
        C_re = (lambda *s: torch.randn(*s, dtype=torch.bfloat16) * 0.1)(D, N)
        C_im = (lambda *s: torch.randn(*s, dtype=torch.bfloat16) * 0.1)(D, N)
        log_dt = (lambda *s: torch.randn(*s, dtype=torch.bfloat16) * 0.05)(D) * 0.5 - 4.0
        Dskip = (lambda *s: torch.randn(*s, dtype=torch.bfloat16) * 0.05)(D)
        return {
            "u": _w((lambda *s: torch.randn(*s, dtype=torch.bfloat16) * 0.05)(B, L, D)),
            "A_re": _w(A_re),
            "A_im": _w(A_im),
            "B_re": _w(B_re),
            "B_im": _w(B_im),
            "C_re": _w(C_re),
            "C_im": _w(C_im),
            "log_dt": _w(log_dt),
            "Dskip": _w(Dskip),
        }
    _A_in = _A_setup()

    def _B_setup():
        B, S, D, F = 1, 2048, 640, 1728
        return {
            "x": _w((lambda *s: torch.randn(*s, dtype=torch.bfloat16) * 0.05)(B, S, D)),
            "W_gate": _w((lambda *s: torch.randn(*s, dtype=torch.bfloat16) * 0.4)(D, F) * (2.0 / D) ** 0.5),
            "W_up": _w((lambda *s: torch.randn(*s, dtype=torch.bfloat16) * 0.4)(D, F) * (2.0 / D) ** 0.5),
            "W_down": _w((lambda *s: torch.randn(*s, dtype=torch.bfloat16) * 0.4)(F, D) * (1.0 / F) ** 0.5),
        }
    _B_in = _B_setup()

    return {
        "A_u": _A_in["u"],
        "A_A_re": _A_in["A_re"],
        "A_A_im": _A_in["A_im"],
        "A_B_re": _A_in["B_re"],
        "A_B_im": _A_in["B_im"],
        "A_C_re": _A_in["C_re"],
        "A_C_im": _A_in["C_im"],
        "A_log_dt": _A_in["log_dt"],
        "A_Dskip": _A_in["Dskip"],
        "B_x": _B_in["x"],
        "B_W_gate": _B_in["W_gate"],
        "B_W_up": _B_in["W_up"],
        "B_W_down": _B_in["W_down"],
    }

def reference(A_u, A_A_re, A_A_im, A_B_re, A_B_im, A_C_re, A_C_im, A_log_dt, A_Dskip, B_x, B_W_gate, B_W_up, B_W_down):
    def _A_ref(u, A_re, A_im, B_re, B_im, C_re, C_im, log_dt, Dskip):
        Bsz, L, D = u.shape
        dt = torch.exp(log_dt)[:, None]
        A = A_re + 1j * A_im
        Bc = B_re + 1j * B_im
        Cc = C_re + 1j * C_im
        logdA = dt * A
        dB = dt * Bc
        l = (lambda x, dt: x.to(dt))(torch.arange(L), A_re.dtype)
        P = torch.exp(logdA[:, :, None] * l[None, None, :])
        K = torch.einsum("dn,dnl,dn->dl", Cc, P, dB).real
        L2 = 2 * L
        Kp = _pad(K, ((0, 0), (0, L)))
        up = (lambda x, *d: x.permute(*d))(u, 0, 2, 1)
        up = _pad(up, ((0, 0), (0, 0), (0, L)))
        Kf = (lambda x, axes=(-2,-1): torch.fft.rfft2(x.float(), dim=axes))(Kp[:, None, :], axes=(-2, -1))
        Uf = (lambda x, axes=(-2,-1): torch.fft.rfft2(x.float(), dim=axes))(up[:, :, None, :], axes=(-2, -1))
        Yf = Uf * Kf[None, :, :, :]
        y = (lambda x, s, axes=(-2,-1): torch.fft.irfft2(x, s=s, dim=axes).to(torch.bfloat16))(Yf, (1, L2), axes=(-2, -1))[:, :, 0, :L]
        y = (lambda x, *d: x.permute(*d))(y, 0, 2, 1) + u * Dskip[None, None, :]
        return y

    def _B_ref(x, W_gate, W_up, W_down):
        gate = torch.einsum("bsd,df->bsf", x, W_gate)
        up = torch.einsum("bsd,df->bsf", x, W_up)
        gate = gate * (lambda x, dt: x.to(dt))(gate > 0, gate.dtype)
        h = gate * up
        return torch.einsum("bsf,fd->bsd", h, W_down)

    x = A_u
    xn = _layernorm(x, axis=-1)
    return x + _A_ref(xn, A_A_re, A_A_im, A_B_re, A_B_im, A_C_re, A_C_im, A_log_dt, A_Dskip) + _B_ref(xn, B_W_gate, B_W_up, B_W_down)
```

```python
import re

REG_RE = re.compile(r"^(-?)(?:abs\()?([vsa])(?:(\d+)|\[(\d+):(\d+)\])\)?$")

def regs_of(tok):
    tok = tok.strip()
    if tok in ("vcc",): return {("s", "vcc")}
    if tok in ("vcc_lo", "vcc_hi"): return {("s", "vcc")}
    if tok == "exec" or tok in ("exec_lo", "exec_hi"): return {("s", "exec")}
    if tok == "m0": return {("s", "m0")}
    m = REG_RE.match(tok)
    if not m: return set()
    k = m.group(2)
    if m.group(3) is not None: return {(k, int(m.group(3)))}
    return {(k, i) for i in range(int(m.group(4)), int(m.group(5)) + 1)}

def split_ops(s):
    out, depth, cur = [], 0, ""
    for ch in s:
        if ch in "[(": depth += 1
        if ch in "])": depth -= 1
        if ch == "," and depth == 0:
            out.append(cur.strip()); cur = ""
        else: cur += ch
    if cur.strip(): out.append(cur.strip())
    return out

TRANS = ("v_exp_f32", "v_log_f32", "v_rcp_f32", "v_rsq_f32", "v_sqrt_f32", "v_sin_f32", "v_cos_f32")

class Ins:
    def __init__(self, text):
        self.text = text
        t = text.split(";")[0].strip()
        self.label = t.endswith(":")
        self.directive = t.startswith(".")
        self.op = ""; self.dst = set(); self.src = set(); self.kind = "none"
        if self.label or self.directive or not t: return
        parts = t.split(None, 1)
        self.op = op = parts[0]
        rest = parts[1] if len(parts) > 1 else ""
        ops = split_ops(rest)
        if ops:
            last = ops[-1].split()
            mods = last[1:]; ops[-1] = last[0]
        else: mods = []
        self.mods = mods
        R = [regs_of(o) for o in ops]
        allr = set().union(*R) if R else set()
        if op.startswith("v_mfma"):
            self.kind = "mfma"; self.dst = R[0]; self.src = R[1] | R[2] | R[3]
            self.srcab = R[1] | R[2]; self.srcc = R[3]
            self.passes = 8 if "32x32x16" in op else 4
        elif op.startswith("v_"):
            self.kind = "valu"
            self.dst = R[0]; self.src = set().union(*R[1:]) if len(R) > 1 else set()
            if op.startswith(("v_fmac", "v_dot2c", "v_writelane")): self.src |= R[0]
            if op.startswith("v_permlane"): self.dst = R[0] | R[1]; self.src = R[0] | R[1]
            if op.startswith(("v_add_co", "v_sub_co", "v_addc_co")): self.dst = R[0] | R[1]; self.src = set().union(*R[2:])
            if op.startswith("v_cndmask") and len(ops) == 3: self.src |= {("s", "vcc")}
            self.dpp = any(m.startswith(("row_", "quad_perm", "wave_")) for m in mods)
            if self.dpp and not op.startswith("v_mov"): self.src |= R[0]
            self.trans = op.replace("_e32", "").replace("_e64", "") in TRANS
        elif op.startswith("ds_"):
            self.kind = "ds"
            if op.startswith(("ds_read", "ds_bpermute", "ds_permute", "ds_swizzle")) or "_rtn" in op:
                self.dst = R[0]; self.src = set().union(*R[1:]) if len(R) > 1 else set()
            else: self.src = allr
        elif op.startswith(("buffer_", "global_")):
            self.kind = "vmem"
            self.lds = "lds" in mods or "_lds_" in op
            if self.lds: self.src = allr | {("s", "m0")}
            elif "load" in op: self.dst = R[0]; self.src = set().union(*R[1:])
            else: self.src = allr
            self.wide_store = "store" in op and ("x3" in op or "x4" in op)
            if self.wide_store:
                self.sdata = R[0] if op.startswith("buffer_") else R[1]
        elif op.startswith("s_"):
            self.kind = "salu"
            if op.startswith(("s_cmp", "s_cbranch", "s_branch", "s_waitcnt", "s_barrier", "s_nop", "s_endpgm", "s_setprio", "s_sleep", "s_bitcmp")):
                self.src = allr
            else:
                self.dst = R[0] if R else set(); self.src = set().union(*R[1:]) if len(R) > 1 else set()
                if "saveexec" in op: self.dst |= {("s", "exec")}
        self.states = 1
        if op == "s_nop": self.states = int(ops[0]) + 1

def need(prod, cons):
    n = 0
    pd = prod.dst
    vd = {r for r in pd if r[0] in "va"}
    sd = {r for r in pd if r[0] == "s"}
    if prod.kind == "valu":
        if cons.kind == "mfma" and vd & cons.src: n = max(n, 2)
        if cons.kind == "mfma" and ("s", "exec") in sd: n = max(n, 4)
        if cons.kind == "vmem" and sd & cons.src: n = max(n, 5)
        if cons.kind == "valu":
            if sd & cons.src:
                n = max(n, 4 if cons.op.startswith(("v_readlane", "v_writelane")) else 2)
            if vd & cons.src:
                if cons.op.startswith(("v_readlane", "v_readfirstlane")): n = max(n, 1)
                if cons.op.startswith("v_permlane") or cons.dpp: n = max(n, 2)
                if prod.trans and not cons.trans: n = max(n, 1)
            if ("s", "exec") in sd and (cons.dpp or cons.op.startswith(("v_readlane", "v_readfirstlane", "v_permlane", "v_writelane"))): n = max(n, 5)
    if prod.op.startswith("v_dot") and cons.op != prod.op and vd & (cons.src | cons.dst): n = max(n, 3)
    if prod.kind == "salu" and ("s", "m0") in sd and cons.kind == "vmem" and cons.lds: n = max(n, 1)
    if prod.kind == "vmem" and prod.wide_store and cons.dst & prod.sdata:
        n = max(n, 2)
    if prod.kind == "mfma":
        p8 = prod.passes == 8
        if cons.kind == "mfma":
            if vd & cons.srcab: n = max(n, 12 if p8 else 8)
            if vd & cons.srcc and not (vd == cons.srcc and cons.passes == prod.passes): n = max(n, 10 if p8 else 6)
            if vd & cons.dst and not (vd == cons.dst and vd == cons.srcc): n = max(n, 10 if p8 else 6)
        elif cons.kind in ("valu", "ds", "vmem"):
            if vd & (cons.src | cons.dst): n = max(n, 12 if p8 else 8)
            if cons.kind == "valu" and prod.srcc & cons.dst: n = max(n, 7 if p8 else 3)
    return n

class Asm:
    def __init__(self):
        self.lines = []
        self.vq = []
        self.uid = 0
    def __call__(self, text):
        for l in text.split("\n"):
            l = l.strip()
            if l: self.lines.append(l)
    def extend(self, lines):
        for l in lines: self(l)
    def label(self, name): self.lines.append(name + ":")
    def newlabel(self, stem):
        self.uid += 1
        return f"L_{stem}_{self.uid}"
    def vm(self, text, tag=None):
        self(text); self.vq.append(tag)
    def wait_vm(self, tag, extra=""):
        hit = [i for i, t in enumerate(self.vq) if t == tag]
        if not hit:
            if extra: self(f"s_waitcnt {extra}")
            return
        idx = max(hit)
        n = len(self.vq) - 1 - idx
        assert n <= 63
        self(f"s_waitcnt vmcnt({n}) {extra}".strip())
        self.vq = self.vq[idx + 1:]
    def wait_vm_all(self):
        self("s_waitcnt vmcnt(0)"); self.vq = []

def pad_hazards(lines, window=20):
    ins = [Ins(l) for l in lines]
    labels = {i.text.split(";")[0].strip()[:-1]: k for k, i in enumerate(ins) if i.label}
    preds = {}
    for k, i in enumerate(ins):
        if i.op.startswith(("s_cbranch", "s_branch")):
            tgt = i.text.split(";")[0].split()[-1]
            assert tgt in labels, tgt
            preds.setdefault(labels[tgt], []).append(k)
    pad = [0] * len(ins)
    def walk(k, d, seen, acc):
        j = k
        while True:
            d += pad[j]
            j -= 1
            if j < 0 or d >= window: return
            p = ins[j]
            if p.label:
                for b in preds.get(j, []):
                    if (b, d) not in seen:
                        seen.add((b, d)); walk(b, d + 1, seen, acc)
            elif p.op:
                if p.op in ("s_branch", "s_endpgm"): return
                acc.append((p, d)); d += p.states
    for k, c in enumerate(ins):
        if not c.op or c.kind == "none": continue
        acc = []
        walk(k, 0, set(), acc)
        short = 0
        for p, d in acc:
            n = need(p, c)
            if n > d: short = max(short, n - d)
        pad[k] = short
    out = []; total = 0
    for k, i in enumerate(ins):
        n = pad[k]; total += n
        while n > 0:
            m = min(n, 16); out.append(f"s_nop {m - 1}"); n -= m
        out.append(i.text)
    return out, total
```

```python
import sys
from asm import Asm, pad_hazards

NAME = "parallel_sum__ssm_conv_s4__glu_gated_reglu__prompt"

WS_EPOCH = 0
WS_FLAGA = 4096
WS_FLAGB = 8192
WS_FLAGC = 12288
WS_STATS = 16384
WS_XNT = 32768
WS_Y = WS_XNT + 256 * 10240
WS_H = WS_Y + 640 * 4096
WS_END = WS_H + 128 * 57344
WS_DBG = WS_END
WS_DBG_END = WS_DBG + (4 << 20)

WSLOT = 14592; UOFF = 7296
XR = 4 * WSLOT; XSLOT = 8192
XS = XR + 4 * XSLOT; XSS = 4608
KC = XS + 3 * XSS; KCS = 16640; KCP = 4160
TB = KC + 3 * KCS; TBS = 2592
CNT = TB + 3 * TBS
LDS_SIZE = 163840
assert CNT + 64 <= TB + 8192 <= LDS_SIZE
LNS = XS; LNP = 1344
PB = KC + 2 * KCS
G2R = 20480

def P(i): return f"s[{8+2*i}:{9+2*i}]"
def Plo(i): return f"s{8+2*i}"
def Phi(i): return f"s{9+2*i}"
SRD_WS, SRD_X, SRD_W, SRD_O = "s[40:43]", "s[44:47]", "s[48:51]", "s[52:55]"
sWAVE, sW, sRB, sTB, sDB, sT0, sCQ, sGRP, sNCH, sCH0, sTAG = [f"s{i}" for i in range(56, 67)]
sT = [f"s{i}" for i in range(67, 76)]
sSPIN = "s76"
STAMP0 = 80
SPIN_MAX = 1 << 18
LOG2E = 0x3fb8aa3b; INV2PI = 0x3e22f983; ONES = 0x3f803f80

class Opt:
    debug = False
    dump = False

def srd(a, name, ptr, nbytes):
    b = int(name[2:name.index(":")])
    a(f"s_mov_b32 s{b}, {Plo(ptr)}\ns_and_b32 s{b+1}, {Phi(ptr)}, 0xffff\ns_mov_b32 s{b+2}, {nbytes}\ns_mov_b32 s{b+3}, 0x20000")

def stamp(a, k):
    if Opt.debug: a(f"s_memrealtime s[{STAMP0+2*k}:{STAMP0+2*k+1}]")

def dump_stamps(a, n):
    if not Opt.debug: return
    a("s_waitcnt lgkmcnt(0)")
    a(f"s_lshl_b32 {sT[0]}, s2, 3\ns_add_u32 {sT[0]}, {sT[0]}, {sWAVE}\ns_lshl_b32 {sT[0]}, {sT[0]}, 6\ns_add_u32 {sT[0]}, {sT[0]}, {WS_DBG}")
    a("v_mov_b32 v250, 0\ns_mov_b64 exec, 1")
    for k in range(n):
        a(f"v_mov_b32 v251, s{STAMP0+2*k}\nbuffer_store_dword v251, v250, {SRD_WS}, {sT[0]} offen offset:{4*k}")
    a("s_mov_b64 exec, -1")

def spin_flags(a, load, check, name):
    L = a.newlabel(name); E = a.newlabel(name + "_ok")
    a(f"s_mov_b32 {sSPIN}, {SPIN_MAX}")
    a.label(L)
    a(load); a("s_waitcnt vmcnt(0)"); a.vq = []
    a(check)
    a(f"s_cbranch_vccz {E}\ns_sub_u32 {sSPIN}, {sSPIN}, 1\ns_cmp_lg_u32 {sSPIN}, 0\ns_cbranch_scc1 {L}")
    a.label(E)

def common(a):
    a("s_cmp_ge_u32 s2, 256\ns_cbranch_scc1 L_exit")
    a("s_load_dwordx16 s[8:23], s[0:1], 0\ns_load_dwordx16 s[24:39], s[0:1], 64")
    stamp(a, 0)
    a(f"v_lshrrev_b32 v1, 6, v0\nv_and_b32 v0, 63, v0\nv_readfirstlane_b32 {sWAVE}, v1")
    x, i = sT[0], sT[1]
    a(f"""s_and_b32 {x}, s2, 7
    s_lshr_b32 {i}, s2, 3
    s_and_b32 {sRB}, {x}, 1
    s_lshl_b32 {sRB}, {sRB}, 3
    s_and_b32 {sT[2]}, {i}, 7
    s_add_u32 {sRB}, {sRB}, {sT[2]}
    s_lshr_b32 {sCQ}, {i}, 3
    s_lshr_b32 {sGRP}, {x}, 1
    s_mul_i32 {sT0}, {sGRP}, 27
    s_mul_i32 {sT[3]}, {sCQ}, 7
    s_add_u32 {sT0}, {sT0}, {sT[3]}
    s_lshr_b32 {sNCH}, {sCQ}, 1
    s_add_u32 {sNCH}, {sNCH}, 2
    s_mul_i32 {sCH0}, {x}, 80
    s_mul_i32 {sT[2]}, {sT[2]}, 10
    s_add_u32 {sCH0}, {sCH0}, {sT[2]}
    s_lshl_b32 {sT[3]}, {sCQ}, 1
    s_cmp_eq_u32 {sCQ}, 3
    s_cselect_b32 {sT[3]}, 7, {sT[3]}
    s_add_u32 {sCH0}, {sCH0}, {sT[3]}
    s_lshl_b32 {sTB}, {x}, 2
    s_and_b32 {sT[3]}, {i}, 3
    s_add_u32 {sTB}, {sTB}, {sT[3]}
    s_lshr_b32 {sDB}, {i}, 2
    s_and_b32 {sW}, {sWAVE}, 3
    s_cmp_ge_u32 {sWAVE}, 4
    s_cbranch_scc1 L_helper""")

def wait_kernarg(a):
    a("s_waitcnt lgkmcnt(0)")
    a(f"s_load_dword {sTAG}, {P(15)}, {WS_EPOCH}")
    srd(a, SRD_WS, 15, WS_DBG_END if (Opt.debug or Opt.dump) else WS_END)
    srd(a, SRD_X, 0, 2048 * 1280)

def finish_tag(a):
    a(f"s_waitcnt lgkmcnt(0)\ns_mul_i32 {sTAG}, {sTAG}, 1664525\ns_add_u32 {sTAG}, {sTAG}, 1013904223")

class Lgkm:
    def __init__(self, a): self.a = a; self.q = []
    def op(self, text, tag): self.a(text); self.q.append(tag)
    def wait(self, *tags):
        idx = [i for i, t in enumerate(self.q) if t in tags]
        if not idx: return
        n = min(len(self.q) - 1 - max(idx), 15)
        self.a(f"s_waitcnt lgkmcnt({n})"); self.q = self.q[len(self.q) - n:] if n else []
    def wait_all(self):
        self.a("s_waitcnt lgkmcnt(0)"); self.q = []

vWa, vWb, vSa, vSb, vX0a, vX1a, vX0b, vX1b, vM0, vM1, vHS = [f"v{i}" for i in range(1, 12)]
CS = 12
SET = {"a": dict(W=[16, 20, 24, 28], X=[32, 36]), "b": dict(W=[40, 44, 48, 52], X=[56, 60])}
ADDR = {"a": dict(W=vWa, S=vSa, X=[vX0a, vX1a]), "b": dict(W=vWb, S=vSb, X=[vX0b, vX1b])}
ACC = [64 + 16 * i for i in range(7)]
TILE = [(0, 0), (0, 1), (1, 0), (1, 1), (2, 0), (2, 1), (3, 0)]
def q4(r): return f"v[{r}:{r+3}]"
def q2(r): return f"v[{r}:{r+1}]"

def g1_reads(half, slot):
    s, ad = SET[half], ADDR[half]
    def wr(k):
        reg = ad["S"] if k == 3 else ad["W"]
        off = slot * WSLOT + (0 if k == 3 else 32 * k)
        return [((half, "W", k), f"ds_read_b64_tr_b16 {q2(s['W'][k])}, {reg} offset:{off}"),
                ((half, "W", k), f"ds_read_b64_tr_b16 {q2(s['W'][k]+2)}, {reg} offset:{off+896}")]
    def xr(k): return [((half, "X", k), f"ds_read_b128 {q4(s['X'][k])}, {ad['X'][k]} offset:{slot*XSLOT}")]
    return xr(0) + wr(0) + xr(1) + wr(1) + wr(2) + wr(3)

def g1_half(a, lg, half, reads, barrier, colsum, extra=()):
    s = SET[half]
    reads = list(reads); extra = list(extra)
    dots = []
    if barrier: lg.wait_all()
    for m, (w, x) in enumerate(TILE):
        lg.wait((half, "W", w), (half, "X", x))
        a(f"v_mfma_f32_32x32x16_bf16 v[{ACC[m]}:{ACC[m]+15}], {q4(s['W'][w])}, {q4(s['X'][x])}, v[{ACC[m]}:{ACC[m]+15}]")
        if colsum and x == 0:
            dots += [f"v_dot2c_f32_bf16 v{CS+w}, {sT[8]}, v{s['W'][w]+d}" for d in range(4)]
        if barrier and m == 0:
            a("s_barrier");
            if callable(barrier): barrier()
            continue
        for _ in range(2):
            if reads:
                t, txt = reads.pop(0); lg.op(txt, t)
        nd = 4 if m == 6 else (2 if m < 5 else 3)
        for _ in range(nd):
            if dots: a(dots.pop(0))
        if extra and m >= 2: a(extra.pop(0))
    for d in dots: a(d)
    for t, txt in reads: lg.op(txt, t)
    for e in extra: a(e)

def gemm_waves(a):
    th, fg = sT[0], sT[1]
    a(f"s_and_b32 {th}, {sW}, 1\ns_lshr_b32 {fg}, {sW}, 1")
    a(f"""v_and_b32 v16, 15, v0
    v_lshrrev_b32 v16, 2, v16
    v_lshrrev_b32 v17, 5, v0
    v_lshl_add_u32 v16, v17, 3, v16
    v_mul_u32_u24 v16, 224, v16
    v_bfe_u32 v18, v0, 4, 1
    v_mul_u32_u24 v18, {UOFF}, v18
    v_and_b32 v19, 3, v0
    v_lshlrev_b32 v19, 3, v19
    v_add3_u32 v16, v16, v18, v19
    s_mul_i32 {sT[2]}, {th}, 3584
    s_sub_u32 {sT[3]}, 3584, {sT[2]}
    s_mul_i32 {sT[4]}, {fg}, 96
    s_add_u32 {sT[5]}, {sT[2]}, {sT[4]}
    v_add_u32 {vWa}, {sT[5]}, v16
    s_add_u32 {sT[5]}, {sT[3]}, {sT[4]}
    v_add_u32 {vWb}, {sT[5]}, v16
    s_add_u32 {sT[5]}, {sT[2]}, 192
    v_add_u32 {vSa}, {sT[5]}, v16
    s_add_u32 {sT[5]}, {sT[3]}, 192
    v_add_u32 {vSb}, {sT[5]}, v16
    v_and_b32 v18, 31, v0
    v_lshlrev_b32 v19, 6, v18
    v_bfe_u32 v20, v0, 2, 2
    s_lshl_b32 {sT[2]}, {th}, 1
    v_add_u32 v21, {sT[2]}, v17
    v_xor_b32 v22, v21, v20
    v_xor_b32 v23, 2, v22
    v_lshl_add_u32 v22, v22, 4, v19
    v_lshl_add_u32 v23, v23, 4, v19
    s_lshl_b32 {sT[2]}, {th}, 12
    s_add_u32 {sT[2]}, {sT[2]}, {XR}
    s_lshl_b32 {sT[3]}, {fg}, 11
    s_add_u32 {sT[4]}, {sT[2]}, {sT[3]}
    s_sub_u32 {sT[5]}, {sT[2]}, {sT[3]}
    s_add_u32 {sT[5]}, {sT[5]}, 2048
    v_add_u32 {vX0a}, {sT[4]}, v22
    v_add_u32 {vX1a}, {sT[5]}, v22
    v_add_u32 {vX0b}, {sT[4]}, v23
    v_add_u32 {vX1b}, {sT[5]}, v23
    v_bfe_u32 v20, v0, 4, 1
    v_mul_u32_u24 v20, 57344, v20
    v_and_b32 v21, 15, v0
    v_lshl_add_u32 v21, v17, 4, v21
    v_lshl_add_u32 {vHS}, v21, 4, v20""")
    for r in list(range(CS, CS + 4)) + list(range(64, 256)): a(f"v_mov_b32 v{r}, 0")
    wait_kernarg(a)
    srd(a, SRD_W, 12, 1728 * 1280)
    srd(a, SRD_O, 13, 2048 * 1280)
    finish_tag(a)
    a(f"s_mov_b32 {sT[8]}, {ONES}")
    lg = Lgkm(a)
    a("s_barrier")
    stamp(a, 1)
    for t, txt in g1_reads("a", 0): lg.op(txt, t)
    a(f"s_mov_b32 {sT[7]}, 4")
    a(".p2align 6"); a.label("L_g1")
    entry = list(lg.q)
    for st in range(4):
        g1_half(a, lg, "a", g1_reads("b", st), None, True)
        g1_half(a, lg, "b", g1_reads("a", (st + 1) & 3), True, False)
    assert lg.q == entry
    a(f"s_sub_u32 {sT[7]}, {sT[7]}, 1\ns_cmp_lg_u32 {sT[7]}, 0\ns_cbranch_scc1 L_g1")
    def load_means():
        a(f"""s_lshl_b32 {sT[2]}, {sRB}, 7
        s_lshl_b32 {sT[3]}, {th}, 6
        s_add_u32 {sT[2]}, {sT[2]}, {sT[3]}
        s_lshl_b32 {sT[3]}, {fg}, 5
        s_add_u32 {sT[4]}, {sT[2]}, {sT[3]}
        s_sub_u32 {sT[5]}, {sT[2]}, {sT[3]}
        s_add_u32 {sT[5]}, {sT[5]}, 32
        s_lshl_b32 {sT[4]}, {sT[4]}, 3
        s_lshl_b32 {sT[5]}, {sT[5]}, 3
        s_add_u32 {sT[4]}, {sT[4]}, {WS_STATS}
        s_add_u32 {sT[5]}, {sT[5]}, {WS_STATS}
        v_and_b32 {vM1}, 31, v0
        v_lshlrev_b32 {vM1}, 3, {vM1}""")
        a.vm(f"buffer_load_dword {vM0}, {vM1}, {SRD_WS}, {sT[4]} offen sc1", "m")
        a.vm(f"buffer_load_dword {vM1}, {vM1}, {SRD_WS}, {sT[5]} offen sc1", "m")
    for st in range(16, 19):
        g1_half(a, lg, "a", g1_reads("b", st & 3), None, True)
        g1_half(a, lg, "b", g1_reads("a", (st + 1) & 3), load_means if st == 17 else True, False)
    g1_half(a, lg, "a", g1_reads("b", 3), None, True)
    a(f"s_xor_b32 {sT[2]}, {sW}, 1\ns_mul_i32 {sT[2]}, {sT[2]}, {G2R}\nv_lshlrev_b32 v17, 4, v0\nv_add_u32 v16, {sT[2]}, v17")
    lg.op(f"ds_write_b128 v16, {q4(CS)}", "cs")
    a(f"s_mul_i32 {sT[2]}, {sW}, {G2R}\nv_add_u32 v16, {sT[2]}, v17")
    def part():
        lg.op(f"ds_read_b128 {q4(20)}, v16", "cs2")
    zero = [f"v_mov_b32 v{r}, 0" for r in (17, 18, 19, 25, 26, 27, 29, 30, 31, 33, 34, 35, 37, 38, 39)]
    g1_half(a, lg, "b", [], part, False, extra=[])
    stamp(a, 2)
    lg.wait("cs2")
    for k in range(4): a(f"v_add_f32 v{CS+k}, v{CS+k}, v{20+k}")
    for z in zero: a(z)
    a("v_mov_b32 v21, 0\nv_mov_b32 v22, 0\nv_mov_b32 v23, 0")
    for k in range(4):
        d = SET["a"]["W"][k]
        a(f"""v_cvt_pk_bf16_f32 v40, v{CS+k}, v{CS+k}
        v_lshlrev_b32 v40, 16, v40
        v_sub_f32 v40, v{CS+k}, v40
        v_cvt_pk_bf16_f32 v{d}, v{CS+k}, v40""")
    a.wait_vm("m")
    a(f"v_mov_b32 v32, {vM0}\nv_mov_b32 v36, {vM1}")
    for m, (w, x) in enumerate(TILE):
        a(f"v_mfma_f32_32x32x16_bf16 v[{ACC[m]}:{ACC[m]+15}], {q4(SET['a']['W'][w])}, {q4(SET['a']['X'][x])}, v[{ACC[m]}:{ACC[m]+15}]")
    sH0, sH1, sHS = sT[2], sT[3], sT[4]
    a(f"""s_lshl_b32 {sT[5]}, {sRB}, 3
    s_lshl_b32 {sT[6]}, {th}, 2
    s_add_u32 {sT[5]}, {sT[5]}, {sT[6]}
    s_mul_i32 {sT[5]}, {sT[5]}, 57344
    s_mul_i32 {sT[6]}, {sGRP}, 14336
    s_add_u32 {sT[5]}, {sT[5]}, {sT[6]}
    s_mul_i32 {sT[6]}, {sCQ}, 3584
    s_add_u32 {sT[5]}, {sT[5]}, {sT[6]}
    s_add_u32 {sT[5]}, {sT[5]}, {WS_H}
    s_mul_i32 {sT[6]}, {fg}, 114688
    s_add_u32 {sHS}, {sT[5]}, {sT[6]}
    s_sub_u32 {sH1}, {sT[5]}, {sT[6]}
    s_add_u32 {sH1}, {sH1}, 114688
    s_mul_i32 {sT[6]}, {fg}, 1536
    s_add_u32 {sH0}, {sHS}, {sT[6]}
    s_add_u32 {sH1}, {sH1}, {sT[6]}
    s_add_u32 {sHS}, {sHS}, 3072
    s_cmp_eq_u32 {sCQ}, 3
    s_cselect_b32 {sHS}, 0x40000000, {sHS}""")
    for m, (w, x) in enumerate(TILE):
        b = ACC[m]; o = 40 + 4 * (m & 1)
        for r in range(8): a(f"v_max_f32 v{b+r}, 0, v{b+r}")
        for r in range(8): a(f"v_mul_f32 v{b+r}, v{b+r}, v{b+8+r}")
        for r in range(4): a(f"v_cvt_pk_bf16_f32 v{o+r}, v{b+2*r}, v{b+2*r+1}")
        so = sHS if w == 3 else (sH0, sH1)[x]
        a.vm(f"buffer_store_dwordx4 {q4(o)}, {vHS}, {SRD_WS}, {so} offen offset:{0 if w == 3 else 512*w} sc1", "h")
    sFB = sT[2]
    a(f"""s_lshl_b32 {sT[5]}, {sRB}, 1
    s_add_u32 {sT[5]}, {sT[5]}, {th}
    s_lshl_b32 {sT[5]}, {sT[5]}, 4
    s_lshl_b32 {sT[6]}, {sGRP}, 2
    s_add_u32 {sT[5]}, {sT[5]}, {sT[6]}
    s_add_u32 {sT[5]}, {sT[5]}, {sCQ}
    s_lshl_b32 {sT[5]}, {sT[5]}, 1
    s_add_u32 {sT[5]}, {sT[5]}, {fg}
    s_lshl_b32 {sFB}, {sT[5]}, 2
    s_add_u32 {sFB}, {sFB}, {WS_FLAGB}""")
    stamp(a, 3)
    gemm2(a, lg, sFB)

def gemm2(a, lg, sFB):
    vD = [f"v{i}" for i in range(1, 6)]; vH = [f"v{i}" for i in range(6, 10)]; vR = "v10"
    WS_ = [64 + 20 * i for i in range(5)]; HS_ = [16 + 16 * i for i in range(3)]
    A2 = lambda s, j: 176 + 20 * s + 4 * j
    sM, sWo, sHo = sT[3], sT[4], sT[5]
    a(f"s_mul_i32 {sT[6]}, {sDB}, 160\ns_mov_b32 {sT[7]}, 6554")
    for q in range(5):
        a(f"""v_add_u32 v12, {64*q}, v0
        v_mul_u32_u24 v13, {sT[7]}, v12
        v_lshrrev_b32 v13, 16, v13
        v_mul_u32_u24 v14, 10, v13
        v_sub_u32 v14, v12, v14
        v_mul_u32_u24 v13, 1280, v13
        v_lshl_add_u32 v13, v14, 4, v13
        v_add_u32 {vD[q]}, {sT[6]}, v13""")
        if 0 < q < 4: a(f"v_subrev_u32 {vD[q]}, {1024*q}, {vD[q]}")
    a(f"s_mul_i32 {sM}, {sW}, {G2R}\ns_mul_i32 {sWo}, {sW}, {432*1280}")
    def dma(ks):
        slot = ks & 3
        a(f"s_add_u32 m0, {sM}, {slot*5120}")
        for q in range(4): a.vm(f"buffer_load_dwordx4 {vD[q]}, {SRD_W}, {sWo} offen offset:{1024*q} lds", ("W", ks))
        a(f"s_add_u32 m0, {sM}, {slot*5120+4096}")
        a.vm(f"buffer_load_dwordx4 {vD[4]}, {SRD_W}, {sWo} offen lds", ("W", ks))
        a(f"s_add_u32 {sWo}, {sWo}, {32*1280}")
    def wreads(ks):
        return [(("W", ks), f"ds_read_b64_tr_b16 {q2(WS_[ks % 5]+4*j+2*h)}, {vR} offset:{(ks & 3)*5120+32*j+1280*h}") for j in range(5) for h in range(2)]
    for ks in range(4): dma(ks)
    a(f"""v_lshrrev_b32 v12, 5, v0
    v_lshlrev_b32 v12, 4, v12
    v_bfe_u32 v13, v0, 4, 1
    v_lshl_add_u32 v12, v13, 2, v12
    v_bfe_u32 v13, v0, 2, 2
    v_add_u32 v12, v12, v13
    v_mul_u32_u24 v12, 160, v12
    v_and_b32 v13, 3, v0
    v_lshl_add_u32 v12, v13, 3, v12
    v_add_u32 {vR}, {sM}, v12
    v_lshlrev_b32 v12, 4, v0""")
    for s in range(4):
        a(f"""s_add_u32 {sT[6]}, {sW}, {s}
        s_and_b32 {sT[6]}, {sT[6]}, 3
        s_lshl_b32 {sT[7]}, {sTB}, 2
        s_add_u32 {sT[6]}, {sT[6]}, {sT[7]}
        s_mul_i32 {sT[6]}, {sT[6]}, 57344
        v_add_u32 {vH[s]}, {sT[6]}, v12""")
    a.wait_vm("h")
    a(f"v_mov_b32 v12, {sTAG}\nv_mov_b32 v13, 0\ns_mov_b64 exec, 1")
    a.vm(f"buffer_store_dword v12, v13, {SRD_WS}, {sFB} offen sc0 sc1", "flag")
    a("s_mov_b64 exec, -1")
    stamp(a, 4)
    for ks in range(5):
        a.wait_vm(("W", ks))
        for t, txt in wreads(ks): lg.op(txt, t)
        lg.wait_all()
        dma(ks + 4)
    a(f"""s_lshl_b32 {sT[6]}, {sTB}, 4
    s_lshl_b32 {sT[7]}, {sW}, 2
    s_add_u32 {sT[6]}, {sT[6]}, {sT[7]}
    s_lshl_b32 {sT[6]}, {sT[6]}, 3
    s_add_u32 {sT[6]}, {sT[6]}, {WS_FLAGB}
    v_and_b32 v13, 7, v0
    v_lshlrev_b32 v13, 2, v13""")
    stamp(a, 5)
    spin_flags(a, f"buffer_load_dword v12, v13, {SRD_WS}, {sT[6]} offen sc0 sc1", f"v_cmp_ne_u32 vcc, {sTAG}, v12", "pollb")
    stamp(a, 6)
    a(f"s_mul_i32 {sHo}, {sW}, 14336\ns_add_u32 {sHo}, {sHo}, {WS_H}")
    def hload(ks):
        if ks == 13:
            a("v_cmp_lt_u32 vcc, 31, v0\nv_mov_b32 v12, 0x40000000")
            for s in range(4): a(f"v_cndmask_b32 {vH[s]}, {vH[s]}, v12, vcc")
        for s in range(4):
            a.vm(f"buffer_load_dwordx4 {q4(HS_[ks % 3]+4*s)}, {vH[s]}, {SRD_WS}, {sHo} offen sc1", ("H", ks, s))
        a(f"s_add_u32 {sHo}, {sHo}, 1024")
    for ks in range(3): hload(ks)
    XV, YV, vR2 = WS_[4], WS_[4] + 10, "v164"
    for ks in range(14):
        side = []
        if 1 <= ks <= 9:
            kk = ks + 4
            side.append(("waitW", kk))
            side += wreads(kk)
        if 1 <= ks <= 5: side.append(("dma", ks + 8))
        for s in range(4):
            a.wait_vm(("H", ks, s))
            for j in range(5):
                if s == 0 and j == 0 and ks >= 5: lg.wait(("W", ks))
                a(f"v_mfma_f32_16x16x32_bf16 {q4(A2(s, j))}, {q4(WS_[ks % 5]+4*j)}, {q4(HS_[ks % 3]+4*s)}, {q4(A2(s, j))}")
                if side and side[0][0] != "dma":
                    e = side.pop(0)
                    if e[0] == "waitW":
                        if ("W", e[1]) in a.vq: a.wait_vm(("W", e[1]))
                    else: lg.op(e[1], e[0])
        if side:
            lg.wait_all(); dma(side.pop(0)[1])
        if ks + 3 <= 13: hload(ks + 3)
        if ks == 10:
            a(f"""s_mul_i32 {sT[6]}, {sDB}, 320
            s_add_u32 {sT[6]}, {sT[6]}, {WS_FLAGC}
            v_min_u32 v14, 39, v0
            v_lshlrev_b32 v14, 3, v14""")
            stamp(a, 7)
            spin_flags(a, f"buffer_load_dwordx2 v[12:13], v14, {SRD_WS}, {sT[6]} offen sc0 sc1",
                       f"v_xor_b32 v12, {sTAG}, v12\nv_xor_b32 v13, {sTAG}, v13\nv_or_b32 v12, v12, v13\nv_cmp_ne_u32 vcc, 0, v12", "pollc")
            a(f"""s_mul_i32 {sT[6]}, {sDB}, {80*4096}
            s_lshl_b32 {sT[7]}, {sTB}, 7
            s_add_u32 {sT[6]}, {sT[6]}, {sT[7]}
            s_lshl_b32 {sT[7]}, {sW}, 5
            s_add_u32 {sT[6]}, {sT[6]}, {sT[7]}
            s_add_u32 {sT[6]}, {sT[6]}, {WS_Y}
            v_lshrrev_b32 v12, 1, v0
            v_and_b32 v13, 1, v0
            v_lshlrev_b32 v13, 4, v13
            v_lshl_add_u32 v14, v12, 12, v13
            v_add_u32 v15, {32*4096-1024}, v14
            v_min_u32 v12, 15, v12
            v_lshl_add_u32 v12, v12, 12, v13
            v_add_u32 v12, {64*4096-2048}, v12
            s_mov_b32 m0, {sM}""")
            lg.wait(("W", 12))
            a.vm(f"buffer_load_dwordx4 v14, {SRD_WS}, {sT[6]} offen sc1 lds", "y")
            a.vm(f"buffer_load_dwordx4 v15, {SRD_WS}, {sT[6]} offen offset:1024 sc1 lds", "y")
            a.vm(f"buffer_load_dwordx4 v12, {SRD_WS}, {sT[6]} offen offset:2048 sc1 lds", "y")
            a(f"""s_lshl_b32 {sT[6]}, {sTB}, 6
            s_lshl_b32 {sT[7]}, {sW}, 4
            s_add_u32 {sT[6]}, {sT[6]}, {sT[7]}
            v_and_b32 v12, 15, v0
            v_add_u32 v12, {sT[6]}, v12
            v_lshlrev_b32 v13, 3, v12
            v_mul_u32_u24 v12, 1280, v12
            v_lshrrev_b32 v14, 4, v0
            v_lshl_add_u32 v12, v14, 3, v12
            s_mul_i32 {sT[6]}, {sDB}, 160
            v_add_u32 v165, {sT[6]}, v12
            s_mov_b32 {sT[7]}, {WS_STATS+4}""")
            a.vm(f"buffer_load_dword {vR2}, v13, {SRD_WS}, {sT[7]} offen sc1", "x")
            for j in range(5):
                a.vm(f"buffer_load_dwordx2 {q2(XV+2*j)}, v165, {SRD_X}, 0 offen offset:{32*j}", "x")
    stamp(a, 8)
    a(f"v_lshlrev_b32 v12, 4, v0\nv_add_u32 v13, {sM}, v12")
    for s in range(1, 4):
        for j in range(5): lg.op(f"ds_write_b128 v13, {q4(A2(s, j))} offset:{s*5120+1024*j}", "red")
    a.wait_vm("y")
    a(f"""v_bfe_u32 v14, v0, 2, 4
    v_lshlrev_b32 v14, 5, v14
    v_and_b32 v15, 3, v0
    v_lshl_add_u32 v14, v15, 3, v14
    v_add_u32 v14, {sM}, v14""")
    for j in range(5): lg.op(f"ds_read_b64_tr_b16 {q2(YV+2*j)}, v14 offset:{512*j}", "y")
    lg.wait_all()
    a("s_barrier")
    RB = [16, 36, 64]
    for s in range(1, 4):
        a(f"""s_sub_u32 {sT[6]}, {sW}, {s}
        s_and_b32 {sT[6]}, {sT[6]}, 3
        s_mul_i32 {sT[6]}, {sT[6]}, {G2R}
        v_add_u32 v13, {sT[6]}, v12""")
        for j in range(5): lg.op(f"ds_read_b128 {q4(RB[s-1]+4*j)}, v13 offset:{s*5120+1024*j}", ("r", s))
    for s in range(1, 4):
        lg.wait(("r", s))
        for r in range(20): a(f"v_add_f32 v{176+r}, v{176+r}, v{RB[s-1]+r}")
    a.wait_vm("x")
    a("s_mov_b32 %s, 0xffff0000" % sT[6])
    for j in range(5):
        o = 84 + 2 * j
        a(f"""v_lshlrev_b32 v16, 16, v{YV+2*j}
        v_and_b32 v17, {sT[6]}, v{YV+2*j}
        v_lshlrev_b32 v18, 16, v{YV+2*j+1}
        v_and_b32 v19, {sT[6]}, v{YV+2*j+1}
        v_lshlrev_b32 v20, 16, v{XV+2*j}
        v_and_b32 v21, {sT[6]}, v{XV+2*j}
        v_lshlrev_b32 v22, 16, v{XV+2*j+1}
        v_and_b32 v23, {sT[6]}, v{XV+2*j+1}""")
        for r in range(4): a(f"v_add_f32 v{16+r}, v{16+r}, v{20+r}")
        for r in range(4): a(f"v_fmac_f32 v{16+r}, {vR2}, v{176+4*j+r}")
        a(f"v_cvt_pk_bf16_f32 v{o}, v16, v17\nv_cvt_pk_bf16_f32 v{o+1}, v18, v19")
        a.vm(f"buffer_store_dwordx2 {q2(o)}, v165, {SRD_O}, 0 offen offset:{32*j}", "o")
    if Opt.debug:
        a.wait_vm_all(); stamp(a, 9); dump_stamps(a, 10)
    a("s_endpgm")

vDW = [f"v{i}" for i in range(1, 5)]; vDX = ["v5", "v6"]
sWm, sXm, sWo_, sXo, sSL, sIT = "s77", "s78", "s79", "s3", "s4", "s5"
sK = ["s6", "s7", "s0"]; sD = ["s1", sT[7], sT[8]]

def issue_stage(a, tagged):
    a(f"s_mov_b32 m0, {sWm}")
    for q in range(3): a.vm(f"buffer_load_dwordx4 {vDW[q]}, {SRD_W}, {sWo_} offen offset:{1024*q} lds", tagged)
    a("s_mov_b32 exec_hi, 0")
    a.vm(f"buffer_load_dwordx4 {vDW[3]}, {SRD_W}, {sWo_} offen offset:3072 lds", tagged)
    a(f"s_mov_b32 exec_hi, -1\ns_mov_b32 m0, {sXm}")
    for q in range(2): a.vm(f"buffer_load_dwordx4 {vDX[q]}, {SRD_X}, {sXo} offen offset:{1024*q} lds", tagged)
    a(f"""s_add_u32 {sWo_}, {sWo_}, {32*3456}
    s_add_u32 {sXo}, {sXo}, 64
    s_add_u32 {sSL}, {sSL}, 1
    s_and_b32 {sSL}, {sSL}, 3
    s_mul_i32 {sWm}, {sSL}, {WSLOT}
    s_add_u32 {sWm}, {sWm}, s100
    s_lshl_b32 {sXm}, {sSL}, 13
    s_add_u32 {sXm}, {sXm}, s101""")

def duty(a, n, issue=True, lgkm=False):
    a(f"s_waitcnt vmcnt({n})" + (" lgkmcnt(0)" if lgkm else ""))
    a("s_barrier")
    if issue: issue_stage(a, None)

def spin_lds(a, k, src="v7"):
    L = a.newlabel("spin"); E = a.newlabel("spin_ok")
    a(f"""s_waitcnt lgkmcnt(0)
    v_mov_b32 v7, {CNT + 4*k}
    v_mov_b32 v154, 1
    s_mov_b64 exec, 1
    ds_add_u32 v7, v154
    s_mov_b64 exec, -1
    s_mov_b32 {sSPIN}, {SPIN_MAX}""")
    a.label(L)
    a(f"""ds_read_b32 v154, v7
    s_waitcnt lgkmcnt(0)
    v_readfirstlane_b32 {sT[0]}, v154
    s_cmp_ge_u32 {sT[0]}, 4
    s_cbranch_scc1 {E}
    s_sub_u32 {sSPIN}, {sSPIN}, 1
    s_cmp_lg_u32 {sSPIN}, 0
    s_cbranch_scc1 {L}""")
    a.label(E)

def row_sum32(a, v, t):
    for sh in (8, 4, 2, 1): a(f"v_add_f32_dpp {v}, {v}, {v} row_ror:{sh} row_mask:0xf bank_mask:0xf")
    a(f"v_mov_b32 {t}, {v}\nv_permlane16_swap_b32 {v}, {t}\nv_add_f32 {v}, {v}, {t}")

def round_bf16(a, dst, src):
    a(f"v_cvt_pk_bf16_f32 {dst}, {src}, {src}\nv_lshlrev_b32 {dst}, 16, {dst}")

vHL, vH1, vH2, vH3, vPA, vPA3, vA1, vA2l, vA2h, vA3, vAK = [f"v{i}" for i in range(62, 73)]
GI = list(range(73, 84)); vEX = "v84"
LF = [88, 92]; R1F = [96, 100]; R2F = [104, 108]; R3F = 112
D1, D2, D3A, D3B = 116, 120, 124, 128
PSET = [dict(P=[132, 136], P3=140), dict(P=[144, 148], P3=152)]

def param_round(a, base, rnd):
    ar, ai, br, bi, cr, ci, ld, dk = [f"v{base+i}" for i in range(8)]
    for r in (ar, ai, br, bi, cr, ci, ld, dk): a(f"v_lshlrev_b32 {r}, 16, {r}")
    a(f"v_mul_f32 {ld}, {LOG2E}, {ld}\nv_exp_f32 {ld}, {ld}")
    round_bf16(a, ld, ld)
    a(f"""v_mul_f32 v156, {ld}, {ar}
    v_mul_f32 v156, {LOG2E}, v156
    v_mul_f32 v157, {ld}, {ai}
    v_mul_f32 v157, {INV2PI}, v157
    v_rndne_f32 v160, v157
    v_sub_f32 v157, v157, v160
    v_mul_f32 {br}, {ld}, {br}
    v_mul_f32 {bi}, {ld}, {bi}
    v_mul_f32 v158, {cr}, {br}
    v_fma_f32 v158, -{ci}, {bi}, v158
    v_mul_f32 v159, {cr}, {bi}
    v_fma_f32 v159, -{ci}, {br}, -v159
    v_mul_f32 v160, 0x45000000, v156
    v_mul_f32 v161, 0x45000000, v157
    v_fract_f32 v161, v161
    v_exp_f32 v160, v160
    v_sin_f32 v162, v161
    v_cos_f32 v161, v161""")
    a(f"""v_and_b32 v163, 31, v0
    v_lshlrev_b32 v163, 4, v163
    s_mul_i32 {sT[0]}, {sW}, {KCP}
    s_add_u32 {sT[0]}, {sT[0]}, {PB + (1024 if rnd else 0)}
    v_add_u32 v163, {sT[0]}, v163""")
    if rnd == 0:
        a("v_lshrrev_b32 v164, 5, v0\nv_lshl_add_u32 v163, v164, 9, v163")
    a(f"""ds_write_b128 v163, v[156:159]
    v_mul_f32 v161, v158, v161
    v_fmac_f32 v161, v159, v162
    v_mul_f32 v161, v160, v161""")
    row_sum32(a, "v161", "v162")
    a(f"s_cmp_eq_u32 {sW}, 0\ns_cselect_b64 vcc, -1, 0\nv_cndmask_b32 {dk}, 0, {dk}, vcc")
    if rnd == 0:
        a(f"v_readlane_b32 {sK[0]}, v161, 0\nv_readlane_b32 {sK[1]}, v161, 32\nv_readlane_b32 {sD[0]}, {dk}, 0\nv_readlane_b32 {sD[1]}, {dk}, 32")
    else:
        a(f"v_readlane_b32 {sK[2]}, v161, 0\nv_readlane_b32 {sD[2]}, {dk}, 0")

def kgen_reads(q, ps):
    return [f"ds_read_b128 {q4(ps['P'][0])}, {vPA} offset:{16*q}",
            f"ds_read_b128 {q4(ps['P'][1])}, {vPA} offset:{256+16*q}",
            f"ds_read_b64 {q2(ps['P3'])}, {vPA3} offset:{16*q}"]

def kgen_unit(a, q):
    ps = PSET[q & 1]
    a("s_waitcnt lgkmcnt(0)")
    if q < 3:
        for r in kgen_reads(q + 1, PSET[(q + 1) & 1]): a(r)
    evs = []
    T = 156
    for ks in range(2):
        p = ps["P"][ks]
        evs.append((vHL, p, False, LF[ks] + q, (p + 2, p + 3)))
        evs.append((vH1, p, False, R1F[ks] + q, None))
        evs.append((vH2, p, True, R2F[ks] + q, None))
    evs.append((vH3, ps["P3"], True, R3F + q, None))
    for grp in (evs[0:4], evs[4:7]):
        t = [(T + 4 * i, T + 4 * i + 1, T + 4 * i + 2, T + 4 * i + 3) for i in range(len(grp))]
        for (H, p, fr, d, w), (e, ph, s, u) in zip(grp, t): a(f"v_mul_f32 v{e}, {H}, v{p}\nv_mul_f32 v{ph}, {H}, v{p+1}")
        for (H, p, fr, d, w), (e, ph, s, u) in zip(grp, t):
            if fr: a(f"v_fract_f32 v{ph}, v{ph}")
        for (H, p, fr, d, w), (e, ph, s, u) in zip(grp, t): a(f"v_exp_f32 v{e}, v{e}\nv_sin_f32 v{s}, v{ph}\nv_cos_f32 v{ph}, v{ph}")
        for (H, p, fr, d, w), (e, ph, s, u) in zip(grp, t): a(f"v_mul_f32 v{s}, v{e}, v{s}\nv_mul_f32 v{ph}, v{e}, v{ph}")
        for (H, p, fr, d, w), (e, ph, s, u) in zip(grp, t):
            if w:
                a(f"""v_mul_f32 v{e}, v{w[0]}, v{ph}
                v_mul_f32 v{u}, v{w[1]}, v{ph}
                v_fmac_f32 v{e}, v{w[1]}, v{s}
                v_fma_f32 v{u}, -v{w[0]}, v{s}, v{u}""")
        for (H, p, fr, d, w), (e, ph, s, u) in zip(grp, t):
            a(f"v_cvt_pk_bf16_f32 v{d}, v{e}, v{u}" if w else f"v_cvt_pk_bf16_f32 v{d}, v{ph}, v{s}")

def kgen_finish(a):
    mf = "v_mfma_f32_16x16x32_bf16"
    a(f"""{mf} {q4(D1)}, {q4(R1F[0])}, {q4(LF[0])}, 0
    {mf} {q4(D2)}, {q4(R2F[0])}, {q4(LF[0])}, 0
    {mf} {q4(D3A)}, {q4(R3F)}, {q4(LF[0])}, 0
    {mf} {q4(D3B)}, {q4(R3F)}, {q4(LF[1])}, 0
    {mf} {q4(D1)}, {q4(R1F[1])}, {q4(LF[1])}, {q4(D1)}
    {mf} {q4(D2)}, {q4(R2F[1])}, {q4(LF[1])}, {q4(D2)}
    v_cmp_eq_u32 vcc, 0, v0
    v_mov_b32 v156, {sD[0]}
    v_mov_b32 v157, {sK[0]}
    v_cndmask_b32 v156, v156, v157, vcc
    s_mov_b64 exec, 3
    ds_add_f32 {vAK}, v156
    s_mov_b64 exec, -1
    v_cmp_lt_u32 vcc, 31, v0""")
    for r in range(4): a(f"v_cndmask_b32 v{D3A+r}, v{D3A+r}, v{D3B+r}, vcc")
    for r in range(4): a(f"ds_add_f32 {vA3}, v{D3A+r} offset:{64*r}")
    for r in range(4): a(f"ds_add_f32 {vA1}, v{D1+r} offset:{4*r}")
    for r in range(4): a(f"ds_add_f32 {vA2l if r < 2 else vA2h}, v{D2+r} offset:{4*(r & 1)}")

def kgen_expand(a):
    V = {k: 156 + (3 - k) for k in range(3, -8, -1)}
    for n, k in enumerate(range(3, -8, -1)): a(f"ds_read_b32 v{V[k]}, v{GI[n]}")
    for n in range(11): a(f"v_add_u32 v{GI[n]}, {TBS}, v{GI[n]}")
    for r in (vA1, vA2l, vA2h, vA3, vAK): a(f"v_add_u32 {r}, {TBS}, {r}")
    a(f"v_add_u32 {vPA}, 512, {vPA}\nv_add_u32 {vPA3}, 512, {vPA3}")
    a(f"s_mov_b32 {sK[0]}, {sK[1]}\ns_mov_b32 {sK[1]}, {sK[2]}\ns_mov_b32 {sD[0]}, {sD[1]}\ns_mov_b32 {sD[1]}, {sD[2]}")
    a("s_waitcnt lgkmcnt(0)")
    for c in range(4):
        o = 168 + 4 * c
        for i in range(4): a(f"v_cvt_pk_bf16_f32 v{o+i}, v{V[c-2*i]}, v{V[c-2*i-1]}")
        a(f"ds_write_b128 {vEX}, {q4(o)} offset:{KCP*c}")
    a(f"v_add_u32 {vEX}, {KCS}, {vEX}")

def helper_waves(a):
    a.label("L_helper")
    a.vq = []
    a(f"s_mov_b32 {sT[7]}, 4682\ns_and_b32 {sT[2]}, {sW}, 1\ns_mul_i32 {sT[3]}, {sT[2]}, {16*3456}\ns_lshl_b32 {sT[4]}, {sT0}, 5\ns_add_u32 {sT[3]}, {sT[3]}, {sT[4]}")
    for q in range(4):
        a(f"""v_add_u32 v8, {64*q}, v0
        v_mul_u32_u24 v9, {sT[7]}, v8
        v_lshrrev_b32 v9, 16, v9
        v_mul_u32_u24 v10, 14, v9
        v_sub_u32 v10, v8, v10
        v_mul_u32_u24 v9, 3456, v9
        v_lshl_add_u32 v9, v10, 4, v9
        v_add_u32 {vDW[q]}, {sT[3]}, v9""")
        if q: a(f"v_subrev_u32 {vDW[q]}, {1024*q}, {vDW[q]}")
    a(f"""v_lshrrev_b32 v8, 2, v0
    v_mul_u32_u24 v8, 1280, v8
    v_bfe_u32 v9, v0, 4, 2
    v_xor_b32 v9, v9, v0
    v_and_b32 v9, 3, v9
    v_lshl_add_u32 v8, v9, 4, v8
    s_lshl_b32 {sT[3]}, {sRB}, 7
    s_lshl_b32 {sT[4]}, {sW}, 5
    s_add_u32 {sT[3]}, {sT[3]}, {sT[4]}
    s_mul_i32 {sT[3]}, {sT[3]}, 1280
    v_add_u32 {vDX[0]}, {sT[3]}, v8
    v_add_u32 {vDX[1]}, {16*1280-1024}, {vDX[0]}
    s_mul_i32 {sWm}, {sT[2]}, 3584
    s_lshr_b32 {sT[4]}, {sW}, 1
    s_mul_i32 {sT[4]}, {sT[4]}, {UOFF}
    s_add_u32 {sWm}, {sWm}, {sT[4]}
    s_lshl_b32 {sXm}, {sW}, 11
    s_add_u32 {sXm}, {sXm}, {XR}
    s_mov_b32 s100, {sWm}
    s_mov_b32 s101, {sXm}
    s_mov_b32 {sWo_}, 0
    s_mov_b32 {sXo}, 0
    s_mov_b32 {sSL}, 0
    v_lshrrev_b32 v8, 5, v0
    s_lshl_b32 {sT[3]}, s2, 3
    s_lshl_b32 {sT[4]}, {sW}, 1
    s_add_u32 {sT[3]}, {sT[3]}, {sT[4]}
    v_add_u32 v45, {sT[3]}, v8
    v_mul_u32_u24 v9, 1280, v45
    v_and_b32 v10, 31, v0
    v_mul_u32_u24 v11, 40, v10
    v_add_u32 v7, v9, v11
    v_add_u32 v44, {sCH0}, v8
    v_lshlrev_b32 v43, 8, v44
    s_lshl_b32 {sT[4]}, {sW}, 6
    v_lshl_add_u32 v43, v10, 1, v43
    v_add_u32 v43, {sT[4]}, v43
    v_lshlrev_b32 v44, 1, v44
    s_add_u32 {sT[3]}, {sCH0}, 2
    s_min_u32 {sT[3]}, {sT[3]}, 639
    s_lshl_b32 {sT[5]}, {sT[3]}, 8
    s_add_u32 {sT[5]}, {sT[5]}, {sT[4]}
    v_lshlrev_b32 v42, 1, v10
    v_add_u32 v42, {sT[5]}, v42
    s_lshl_b32 {sT[3]}, {sT[3]}, 1
    v_mov_b32 v41, {sT[3]}""")
    wait_kernarg(a)
    a(f"""s_cmp_lt_u32 {sW}, 2
    s_cselect_b32 s48, {Plo(10)}, {Plo(11)}
    s_cselect_b32 s49, {Phi(10)}, {Phi(11)}
    s_and_b32 s49, s49, 0xffff
    s_mov_b32 s50, {640*3456}
    s_mov_b32 s51, 0x20000""")
    issue_stage(a, "s0")
    a.vm(f"buffer_load_dwordx4 v[8:11], v7, {SRD_X}, 0 offen", "ln")
    a.vm(f"buffer_load_dwordx4 v[12:15], v7, {SRD_X}, 0 offen offset:16", "ln")
    a.vm(f"buffer_load_dwordx2 v[16:17], v7, {SRD_X}, 0 offen offset:32", "ln")
    for rnd, (vo, vc) in enumerate((("v43", "v44"), ("v42", "v41"))):
        for i in range(6): a.vm(f"global_load_ushort v{46+8*rnd+i}, {vo}, {P(1+i)}", "par")
        a.vm(f"global_load_ushort v{52+8*rnd}, {vc}, {P(7)}", "par")
        a.vm(f"global_load_ushort v{53+8*rnd}, {vc}, {P(8)}", "par")
    for s in (1, 2, 3): issue_stage(a, f"s{s}")
    a(f"""v_mov_b32 v20, 0
    v_mov_b32 v21, 0
    v_mov_b32 v22, 0
    v_mov_b32 v23, 0
    v_lshlrev_b32 v24, 4, v0
    s_lshl_b32 {sT[3]}, {sW}, 11
    s_add_u32 {sT[3]}, {sT[3]}, {TB}
    v_add_u32 v24, {sT[3]}, v24
    ds_write_b128 v24, v[20:23]
    ds_write_b128 v24, v[20:23] offset:1024
    v_lshrrev_b32 v24, 1, v0
    v_min_u32 v24, 11, v24
    v_mul_u32_u24 v24, {KCP}, v24
    v_and_b32 v25, 1, v0
    v_lshl_add_u32 v24, v25, 4, v24
    v_add_u32 v24, {KC+4096}, v24
    ds_write_b128 v24, v[20:23]""")
    finish_tag(a)
    a.wait_vm("s0"); a("s_barrier")
    stamp(a, 1)
    a.wait_vm("ln")
    a(f"s_mov_b32 {sT[3]}, {ONES}\ns_mov_b32 {sT[4]}, 0xffff0000\nv_mov_b32 v38, 0\nv_mov_b32 v39, 0")
    for i in range(10): a(f"v_dot2c_f32_bf16 v{38+(i&1)}, {sT[3]}, v{8+i}")
    a("v_add_f32 v38, v38, v39")
    for i in range(10): a(f"v_lshlrev_b32 v{18+2*i}, 16, v{8+i}\nv_and_b32 v{19+2*i}, {sT[4]}, v{8+i}")
    row_sum32(a, "v38", "v39")
    a("v_mul_f32 v38, 0x3acccccd, v38\nv_mov_b32 v39, 0\nv_mov_b32 v40, 0")
    for i in range(10):
        a(f"v_sub_f32 v8, v{18+2*i}, v38\nv_sub_f32 v9, v{19+2*i}, v38\nv_fmac_f32 v39, v8, v8\nv_fmac_f32 v40, v9, v9")
    a("v_add_f32 v39, v39, v40")
    row_sum32(a, "v39", "v40")
    a("v_mul_f32 v39, 0x3acccccd, v39")
    round_bf16(a, "v39", "v39")
    a("v_add_f32 v39, 0x3727c5ac, v39")
    round_bf16(a, "v39", "v39")
    a("v_sqrt_f32 v39, v39")
    round_bf16(a, "v39", "v39")
    a("v_rcp_f32 v39, v39\nv_cvt_pk_bf16_f32 v40, v38, v38\nv_lshlrev_b32 v38, 16, v40")
    a.wait_vm("s1"); a("s_barrier"); issue_stage(a, "s4")
    for i in range(20): a(f"v_sub_f32 v{18+i}, v{18+i}, v38")
    for i in range(10): a(f"v_cvt_pk_bf16_f32 v{8+i}, v{18+2*i}, v{19+2*i}")
    for i in range(10):
        a(f"v_lshlrev_b32 v{18+2*i}, 16, v{8+i}\nv_and_b32 v{19+2*i}, {sT[4]}, v{8+i}\nv_mul_f32 v{18+2*i}, v39, v{18+2*i}\nv_mul_f32 v{19+2*i}, v39, v{19+2*i}")
    for i in range(10): a(f"v_cvt_pk_bf16_f32 v{8+i}, v{18+2*i}, v{19+2*i}")
    a(f"""v_lshrrev_b32 v18, 5, v0
    s_lshl_b32 {sT[3]}, {sW}, 1
    v_add_u32 v18, {sT[3]}, v18
    v_mul_u32_u24 v18, {LNP}, v18
    v_and_b32 v19, 31, v0
    v_mul_u32_u24 v19, 40, v19
    v_add_u32 v18, v18, v19
    v_add_u32 v18, {LNS}, v18""")
    for i in range(5): a(f"ds_write_b64 v18, {q2(8+2*i)} offset:{8*i}")
    a(f"v_xor_b32 v40, 0x80008000, v40\nv_mul_f32 v41, v39, v39\nv_lshlrev_b32 v45, 3, v45\ns_mov_b32 {sT[3]}, {WS_STATS}")
    a.wait_vm("s2", "lgkmcnt(0)"); a("s_barrier"); issue_stage(a, "s5")
    a(f"""v_bfe_u32 v18, v0, 2, 2
    v_mul_u32_u24 v18, {LNP}, v18
    v_lshrrev_b32 v19, 4, v0
    v_lshlrev_b32 v19, 5, v19
    v_and_b32 v20, 3, v0
    v_lshl_add_u32 v19, v20, 3, v19
    v_add_u32 v18, v18, v19
    s_lshl_b32 {sT[4]}, {sW}, 7
    s_add_u32 {sT[5]}, {sT[4]}, {LNS}
    v_add_u32 v18, {sT[5]}, v18
    s_cmp_lt_u32 {sW}, 2
    s_cselect_b32 {sT[5]}, 2, 1
    s_lshl_b32 {sT[5]}, {sT[5]}, 9
    v_add_u32 v19, {sT[5]}, v18
    ds_read_b64_tr_b16 v[8:9], v18
    ds_read_b64_tr_b16 v[10:11], v18 offset:{4*LNP}
    ds_read_b64_tr_b16 v[12:13], v18 offset:512
    ds_read_b64_tr_b16 v[14:15], v18 offset:{4*LNP+512}
    ds_read_b64_tr_b16 v[20:21], v19
    ds_read_b64_tr_b16 v[22:23], v19 offset:{4*LNP}
    s_mov_b32 exec_lo, 1
    s_mov_b32 exec_hi, 1""")
    a.vm(f"buffer_store_dwordx2 v[40:41], v45, {SRD_WS}, {sT[3]} offen sc1", "st")
    a(f"""s_mov_b64 exec, -1
    s_mul_i32 {sT[3]}, s2, 10240
    s_lshl_b32 {sT[4]}, {sW}, 10
    s_add_u32 {sT[3]}, {sT[3]}, {sT[4]}
    s_add_u32 {sT[3]}, {sT[3]}, {WS_XNT}
    s_lshl_b32 {sT[5]}, {sT[5]}, 3
    s_add_u32 {sT[5]}, {sT[5]}, {sT[3]}
    s_add_u32 {sT[4]}, {sT[3]}, 4096
    v_lshlrev_b32 v18, 4, v0
    s_waitcnt lgkmcnt(0)""")
    a.vm(f"buffer_store_dwordx4 v[8:11], v18, {SRD_WS}, {sT[3]} offen sc1", "st")
    a.vm(f"buffer_store_dwordx4 v[12:15], v18, {SRD_WS}, {sT[4]} offen sc1", "st")
    a.vm(f"buffer_store_dwordx4 v[20:23], v18, {SRD_WS}, {sT[5]} offen sc1", "st")
    param_round(a, 46, 0)
    a.wait_vm("s3"); a("s_barrier"); issue_stage(a, "s6")
    param_round(a, 54, 1)
    a(f"""v_and_b32 v8, 15, v0
    v_lshrrev_b32 v9, 4, v0
    v_lshlrev_b32 v10, 3, v8
    v_cvt_f32_u32 {vHL}, v10
    v_lshrrev_b32 v11, 3, v8
    v_and_b32 v12, 7, v8
    v_lshl_add_u32 v13, v11, 7, v12
    v_cvt_f32_u32 {vH1}, v13
    v_lshlrev_b32 v13, 7, v12
    v_add_u32 v13, 1024, v13
    v_cvt_f32_u32 {vH3}, v13
    v_lshrrev_b32 v13, 2, v12
    v_lshlrev_b32 v13, 7, v13
    v_and_b32 v14, 3, v12
    v_lshl_add_u32 v13, v14, 1, v13
    v_add_u32 v13, 256, v13
    v_lshrrev_b32 v14, 1, v12
    v_lshlrev_b32 v14, 7, v14
    v_and_b32 v15, 1, v12
    v_lshl_add_u32 v14, v15, 2, v14
    v_add_u32 v14, 512, v14
    v_cmp_lt_u32 vcc, 7, v8
    v_cndmask_b32 v13, v13, v14, vcc
    v_cvt_f32_u32 {vH2}, v13
    s_mul_i32 {sT[3]}, {sW}, {KCP}
    s_add_u32 {sT[3]}, {sT[3]}, {PB}
    v_lshlrev_b32 v13, 6, v9
    v_add_u32 {vPA}, {sT[3]}, v13
    v_lshl_add_u32 {vPA3}, v11, 8, {vPA}
    v_lshrrev_b32 v11, 1, v9
    v_and_b32 v12, 1, v9
    v_lshlrev_b32 v13, 9, v11
    v_lshl_add_u32 v13, v12, 4, v13
    v_lshl_add_u32 v13, v8, 5, v13
    v_add_u32 {vA1}, {TB+16}, v13
    v_lshlrev_b32 v13, 8, v12
    v_lshl_add_u32 v14, v8, 4, v13
    v_add_u32 v14, {TB+16+4*256}, v14
    v_lshl_add_u32 v15, v8, 3, v13
    v_add_u32 v15, {TB+16+4*384}, v15
    v_cmp_lt_u32 vcc, 31, v0
    v_cndmask_b32 {vA2l}, v14, v15, vcc
    v_add_u32 v14, 8, v14
    v_add_u32 v15, 128, v15
    v_cndmask_b32 {vA2h}, v14, v15, vcc
    v_lshl_add_u32 v13, v8, 2, v13
    v_add_u32 {vA3}, {TB+16+4*512}, v13
    v_cmp_eq_u32 vcc, 0, v0
    v_mov_b32 v13, {TB+16}
    v_mov_b32 v14, {TB+16+4*640}
    v_cndmask_b32 {vAK}, v13, v14, vcc""")
    a.wait_vm("s4"); a("s_barrier"); issue_stage(a, "s7")
    a(f"""s_lshl_b32 {sT[3]}, {sW}, 6
    v_add_u32 v8, {sT[3]}, v0
    v_lshlrev_b32 {vEX}, 4, v8
    v_add_u32 {vEX}, {KC}, {vEX}
    v_lshlrev_b32 v8, 3, v8
    v_sub_u32 v8, 2047, v8
    s_mov_b32 {sT[3]}, 0x4280""")
    for n in range(11):
        a(f"""v_max_i32 v10, 0, v8
        v_cvt_f32_i32 v10, v10
        v_cvt_pk_bf16_f32 v10, v10, v10
        v_and_b32 v10, 0xffff, v10
        v_subrev_u32 v10, {sT[3]}, v10
        v_min_i32 v11, 128, v8
        v_max_i32 v10, v10, v11
        v_lshlrev_b32 v10, 2, v10
        v_add_u32 v{GI[n]}, {TB+16}, v10
        v_subrev_u32 v8, 1, v8""")
    a.wait_vm("s5"); a.wait_vm("st") if "st" in a.vq else None
    a("s_barrier")
    a(f"s_cmp_lg_u32 {sW}, 0\ns_cbranch_scc1 L_noflag")
    a(f"s_lshl_b32 {sT[3]}, s2, 2\ns_add_u32 {sT[3]}, {sT[3]}, {WS_FLAGA}\nv_mov_b32 v8, {sTAG}\nv_mov_b32 v9, 0\ns_mov_b64 exec, 1")
    a(f"buffer_store_dword v8, v9, {SRD_WS}, {sT[3]} offen sc0 sc1\ns_mov_b64 exec, -1")
    a.label("L_noflag")
    issue_stage(a, "s8")
    stamp(a, 2)
    a(f"s_mov_b32 {sIT}, 0")
    a.label("L_chan")
    for r in kgen_reads(0, PSET[0]): a(r)
    def site(k, sync=False):
        S = a.newlabel("nodut"); E = a.newlabel("dut")
        a(f"s_cmp_ge_u32 {sIT}, 2\ns_cbranch_scc1 {S}")
        duty(a, 12, True, lgkm=sync)
        if sync:
            a(f"s_branch {E}"); a.label(S); spin_lds(a, 0); a.label(E)
        else: a.label(S)
    for q in range(4):
        kgen_unit(a, q)
        if q < 3: site(q)
    kgen_finish(a)
    site(3, sync=True)
    kgen_expand(a)
    site(4)
    a(f"s_add_u32 {sIT}, {sIT}, 1\ns_cmp_lt_u32 {sIT}, 2\ns_cbranch_scc1 L_chan\ns_cmp_eq_u32 {sIT}, 3\ns_cbranch_scc1 L_conv")
    stamp(a, 3)
    a.vq = ["s16"] * 6 + ["s17"] * 6 + ["s18"] * 6
    a("v_lshlrev_b32 v12, 4, v0")
    a(f"s_mov_b32 {sT[3]}, {WS_FLAGA}")
    poll = f"buffer_load_dwordx4 v[8:11], v12, {SRD_WS}, {sT[3]} offen sc0 sc1"
    chk = "\n".join(f"v_xor_b32 v{8+i}, {sTAG}, v{8+i}" for i in range(4)) + "\nv_or3_b32 v8, v8, v9, v10\nv_or_b32 v8, v8, v11\nv_cmp_ne_u32 vcc, 0, v8"
    a.vm(poll, "poll")
    a.wait_vm("s16"); a("s_barrier"); issue_stage(a, "s19")
    a.wait_vm("poll"); a(chk); a("s_cbranch_vccz L_aok")
    keep = list(a.vq)
    spin_flags(a, poll, chk, "polla")
    a.vq = keep
    a.label("L_aok")
    a("s_barrier")
    a(f"s_cmp_lg_u32 s2, 0\ns_cbranch_scc1 L_noep\ns_cmp_lg_u32 {sW}, 0\ns_cbranch_scc1 L_noep")
    a(f"s_mov_b32 {sT[3]}, {WS_EPOCH}\nv_mov_b32 v8, {sTAG}\nv_mov_b32 v9, 0\ns_mov_b64 exec, 1")
    a(f"buffer_store_dword v8, v9, {SRD_WS}, {sT[3]} offen sc0 sc1\ns_mov_b64 exec, -1")
    a.label("L_noep")
    a(f"""v_mov_b32 v20, 0
    v_mov_b32 v21, 0
    v_mov_b32 v22, 0
    v_mov_b32 v23, 0
    v_and_b32 v24, 31, v0
    v_lshlrev_b32 v24, 4, v24
    s_min_u32 {sT[3]}, {sW}, 2
    s_mul_i32 {sT[3]}, {sT[3]}, {XSS}
    s_add_u32 {sT[3]}, {sT[3]}, {XS}
    v_add_u32 v24, {sT[3]}, v24
    ds_write_b128 v24, v[20:23]
    s_lshl_b32 {sT[3]}, {sW}, 6
    v_add_u32 v8, {sT[3]}, v0
    v_mul_u32_u24 v8, 10240, v8
    s_lshl_b32 {sT[4]}, {sW}, 10
    s_add_u32 {sT[4]}, {sT[4]}, {XS+512}""")
    for j in range(3):
        a(f"""s_add_u32 {sT[3]}, {sCH0}, {j}
        s_min_u32 {sT[3]}, {sT[3]}, 639
        s_lshl_b32 {sT[3]}, {sT[3]}, 4
        s_add_u32 {sT[3]}, {sT[3]}, {WS_XNT}
        s_add_u32 m0, {sT[4]}, {j*XSS}""")
        a.vm(f"buffer_load_dwordx4 v8, {SRD_WS}, {sT[3]} offen sc1 lds", "xs")
    a("s_waitcnt vmcnt(9)\ns_barrier")
    a("s_waitcnt vmcnt(3)\ns_barrier")
    a("s_barrier")
    stamp(a, 4)
    a(f"s_cmp_eq_u32 {sNCH}, 3\ns_cbranch_scc1 L_chan")
    a.label("L_conv")
    a("s_waitcnt vmcnt(0)")
    spin_lds(a, 1)
    stamp(a, 5)
    a(f"s_cmp_ge_u32 {sW}, {sNCH}\ns_cbranch_scc1 L_hdone")
    AS = [64, 96]; BS = [128, 160]; Y0 = 192
    a(f"""v_and_b32 v10, 15, v0
    v_lshrrev_b32 v11, 4, v0
    v_and_b32 v12, 3, v10
    v_sub_u32 v13, v10, v12
    v_lshlrev_b32 v14, 3, v11
    v_sub_u32 v13, v14, v13
    v_add_u32 v13, 236, v13
    v_lshlrev_b32 v13, 1, v13
    v_mul_u32_u24 v12, {KCP}, v12
    s_mul_i32 {sT[3]}, {sW}, {KCS}
    s_add_u32 {sT[3]}, {sT[3]}, {KC}
    v_add3_u32 v8, v12, v13, {sT[3]}
    v_lshlrev_b32 v12, 5, v10
    v_lshl_add_u32 v12, v11, 4, v12
    s_mul_i32 {sT[3]}, {sW}, {XSS}
    s_add_u32 {sT[3]}, {sT[3]}, {XS+480}
    v_add_u32 v9, {sT[3]}, v12""")
    for r in range(32): a(f"v_mov_b32 v{Y0+r}, 0")
    lg = Lgkm(a)
    def creads(st):
        out = []
        for i in range(8):
            out.append(((st, "B", i), f"ds_read_b128 {q4(BS[st]+4*i)}, v9 offset:{512*i}"))
            out.append(((st, "A", i), f"ds_read_b64 {q2(AS[st]+4*i)}, v8 offset:{512*(7-i)}"))
            out.append(((st, "A", i), f"ds_read_b64 {q2(AS[st]+4*i+2)}, v8 offset:{512*(7-i)+8}"))
        return out
    pairs = sorted([(p, q) for p in range(8) for q in range(8) if p + q <= 7], key=lambda t: (max(t), t))
    for t, txt in creads(0):
        lg.op(txt, t)
        if len(lg.q) == 12: lg.wait(lg.q[3])
    lg.wait_all()
    a(f"v_subrev_u32 v8, 64, v8\nv_subrev_u32 v9, 64, v9\ns_mov_b32 {sIT}, 4")
    a(".p2align 6"); a.label("L_cv")
    for st in range(2):
        rd = creads(1 - st)
        for n, (p, q) in enumerate(pairs):
            a(f"v_mfma_f32_16x16x32_bf16 {q4(Y0+4*(p+q))}, {q4(AS[st]+4*p)}, {q4(BS[st]+4*q)}, {q4(Y0+4*(p+q))}")
            if rd:
                if len(lg.q) >= 12: lg.wait(lg.q[3])
                t, txt = rd.pop(0); lg.op(txt, t)
        lg.wait_all()
        a("v_subrev_u32 v8, 64, v8\nv_subrev_u32 v9, 64, v9")
    a(f"s_sub_u32 {sIT}, {sIT}, 1\ns_cmp_lg_u32 {sIT}, 0\ns_cbranch_scc1 L_cv")
    stamp(a, 6)
    a(f"""s_add_u32 {sT[3]}, {sCH0}, {sW}
    s_lshl_b32 {sT[4]}, {sT[3]}, 12
    s_add_u32 {sT[4]}, {sT[4]}, {WS_Y}
    v_bfe_u32 v12, v0, 4, 1
    v_lshlrev_b32 v12, 9, v12
    v_lshl_add_u32 v12, v10, 5, v12
    v_lshrrev_b32 v13, 5, v0
    v_lshl_add_u32 v12, v13, 4, v12""")
    for u in range(4):
        o = 224 + 4 * u; b = Y0 + 8 * u
        for i in range(4): a(f"v_cvt_pk_bf16_f32 v{o+i}, v{b+2*i}, v{b+2*i+1}")
        a(f"v_permlane16_swap_b32 v{o}, v{o+2}\nv_permlane16_swap_b32 v{o+1}, v{o+3}")
        a(f"buffer_store_dwordx4 {q4(o)}, v12, {SRD_WS}, {sT[4]} offen offset:{1024*u} sc1")
    a(f"""s_lshl_b32 {sT[3]}, {sT[3]}, 2
    s_add_u32 {sT[3]}, {sT[3]}, {WS_FLAGC}
    v_mov_b32 v8, {sTAG}
    v_mov_b32 v9, 0
    s_waitcnt vmcnt(0)
    s_mov_b64 exec, 1
    buffer_store_dword v8, v9, {SRD_WS}, {sT[3]} offen sc0 sc1
    s_mov_b64 exec, -1""")
    stamp(a, 7)
    a.label("L_hdone")
    if Opt.debug:
        dump_stamps(a, 8); a("s_waitcnt vmcnt(0)")
    a("s_endpgm")

def build():
    a = Asm()
    common(a)
    gemm_waves(a)
    helper_waves(a)
    a.label("L_exit"); a("s_endpgm")
    lines, nops = pad_hazards(a.lines)
    head = f"""; Fused LayerNorm + S4 convolution + ReGLU MLP for gfx950: one launch, 256 workgroups of 8 waves.
; Waves 0-3 run the two GEMMs, waves 4-7 stage operands, normalise, build the SSM kernel and convolve.
; @launch grid=(256,1,1) block=(512,1,1) lds={LDS_SIZE}
.amdgcn_target "amdgcn-amd-amdhsa--gfx950"
.text
.globl {NAME}_kernel
.p2align 8
.type {NAME}_kernel,@function
{NAME}_kernel:
"""
    tail = f"""
.section .rodata,"a"
.p2align 6
.amdhsa_kernel {NAME}_kernel
  .amdhsa_next_free_vgpr 256
  .amdhsa_next_free_sgpr 102
  .amdhsa_accum_offset 256
  .amdhsa_group_segment_fixed_size 0
  .amdhsa_kernarg_size 128
  .amdhsa_user_sgpr_count 2
  .amdhsa_user_sgpr_kernarg_segment_ptr 1
  .amdhsa_system_sgpr_workgroup_id_x 1
  .amdhsa_float_denorm_mode_32 3
.end_amdhsa_kernel
"""
    body = "\n".join(l if l.endswith(":") or l.startswith(".") else "    " + l for l in lines)
    return head + body + tail, nops

if __name__ == "__main__":
    out = sys.argv[1]
    for o in sys.argv[2:]: setattr(Opt, o, True)
    src, nops = build()
    open(out, "w").write(src)
    print("written", out, "lines", src.count("\n"), "nop states", nops)
```

```python
import sys
from asm import Asm, pad_hazards

NAME = "parallel_sum__ssm_conv_s4__glu_gated_reglu__prompt"

WS_EPOCH = 0
WS_FLAGA = 4096
WS_FLAGB = 8192
WS_FLAGC = 12288
WS_STATS = 16384
WS_XNT = 32768
WS_Y = WS_XNT + 256 * 10240
WS_H = WS_Y + 640 * 4096
WS_END = WS_H + 128 * 57344
WS_DBG = WS_END
WS_DBG_END = WS_DBG + (4 << 20)

WSLOT = 14592; UOFF = 7296
XR = 4 * WSLOT; XSLOT = 8192
XS = XR + 4 * XSLOT; XSS = 4608
KC = XS + 3 * XSS; KCS = 16640; KCP = 4160
TB = KC + 3 * KCS; TBS = 2592
CNT = TB + 3 * TBS
LDS_SIZE = 163840
assert CNT + 64 <= TB + 8192 <= LDS_SIZE
LNS = XS; LNP = 1344
PB = KC + 2 * KCS
G2R = 20480

def P(i): return f"s[{8+2*i}:{9+2*i}]"
def Plo(i): return f"s{8+2*i}"
def Phi(i): return f"s{9+2*i}"
SRD_WS, SRD_X, SRD_W, SRD_O = "s[40:43]", "s[44:47]", "s[48:51]", "s[52:55]"
sWAVE, sW, sRB, sTB, sDB, sT0, sCQ, sGRP, sNCH, sCH0, sTAG = [f"s{i}" for i in range(56, 67)]
sT = [f"s{i}" for i in range(67, 76)]
sSPIN = "s76"
STAMP0 = 80
SPIN_MAX = 1 << 18
LOG2E = 0x3fb8aa3b; INV2PI = 0x3e22f983; ONES = 0x3f803f80

class Opt:
    debug = False
    dump = False
    prof = False
    nokgen = False
    nofin = False
    nodot = False
    nodma = False
    clk = False

def srd(a, name, ptr, nbytes):
    b = int(name[2:name.index(":")])
    a(f"s_mov_b32 s{b}, {Plo(ptr)}\ns_and_b32 s{b+1}, {Phi(ptr)}, 0xffff\ns_mov_b32 s{b+2}, {nbytes}\ns_mov_b32 s{b+3}, 0x20000")

EVN = {"g": [], "h": []}
class Ev:
    role = "g"; reg = "v255"; inloop = 1
def tev(a, name):
    if not Opt.prof: return
    if name not in EVN[Ev.role]: EVN[Ev.role].append(name)
    k = EVN[Ev.role].index(name)
    a(f"s_memtime s[96:97]\ns_waitcnt lgkmcnt(0)\ns_lshl_b32 s96, s96, 6\ns_or_b32 s96, s96, {k}\ns_mov_b32 m0, s98\nv_writelane_b32 {Ev.reg}, s96, m0\ns_add_u32 s98, s98, 1")
def tev_init(a, role, reg):
    Ev.role = role; Ev.reg = reg
    if not Opt.prof: return
    a(f"v_mov_b32 {reg}, 0\ns_mov_b32 s98, 0\ns_memrealtime s[94:95]\ns_memtime s[96:97]\ns_waitcnt lgkmcnt(0)\nv_writelane_b32 {reg}, s94, 62\nv_writelane_b32 {reg}, s96, 63")
def tev_dump(a):
    if not Opt.prof: return
    a(f"""s_lshl_b32 {sT[0]}, s2, 3
    s_add_u32 {sT[0]}, {sT[0]}, {sWAVE}
    s_lshl_b32 {sT[0]}, {sT[0]}, 8
    s_add_u32 {sT[0]}, {sT[0]}, {WS_DBG + (1 << 20)}
    v_lshlrev_b32 v1, 2, v0
    buffer_store_dword {Ev.reg}, v1, {SRD_WS}, {sT[0]} offen
    s_waitcnt vmcnt(0)""")

def stamp(a, k):
    if Opt.debug and not Opt.prof:
        a(f"s_memrealtime s[{STAMP0+2*k}:{STAMP0+2*k+1}]")
        if Opt.clk: a(f"s_memtime s[100:101]\ns_waitcnt lgkmcnt(0)\ns_mov_b32 s{STAMP0+2*k+1}, s100")

def dump_stamps(a, n):
    if Opt.prof: tev_dump(a); return
    if not Opt.debug: return
    a("s_waitcnt lgkmcnt(0)")
    a(f"s_lshl_b32 {sT[0]}, s2, 3\ns_add_u32 {sT[0]}, {sT[0]}, {sWAVE}\ns_lshl_b32 {sT[0]}, {sT[0]}, 7\ns_add_u32 {sT[0]}, {sT[0]}, {WS_DBG}")
    a("v_mov_b32 v250, 0\ns_mov_b64 exec, 1")
    for k in range(n):
        a(f"v_mov_b32 v251, s{STAMP0+2*k}\nbuffer_store_dword v251, v250, {SRD_WS}, {sT[0]} offen offset:{4*k}")
        if Opt.clk: a(f"v_mov_b32 v251, s{STAMP0+2*k+1}\nbuffer_store_dword v251, v250, {SRD_WS}, {sT[0]} offen offset:{64+4*k}")
    a("s_mov_b64 exec, -1")

def spin_flags(a, load, check, name):
    L = a.newlabel(name); E = a.newlabel(name + "_ok")
    a(f"s_mov_b32 {sSPIN}, {SPIN_MAX}")
    a.label(L)
    a(load); a("s_waitcnt vmcnt(0)"); a.vq = []
    a(check)
    a(f"s_cbranch_vccz {E}\ns_sub_u32 {sSPIN}, {sSPIN}, 1\ns_cmp_lg_u32 {sSPIN}, 0\ns_cbranch_scc1 {L}")
    a.label(E)

def common(a):
    a("s_cmp_ge_u32 s2, 256\ns_cbranch_scc1 L_exit")
    a("s_load_dwordx16 s[8:23], s[0:1], 0\ns_load_dwordx16 s[24:39], s[0:1], 64")
    stamp(a, 0)
    a(f"v_lshrrev_b32 v1, 6, v0\nv_and_b32 v0, 63, v0\nv_readfirstlane_b32 {sWAVE}, v1")
    x, i = sT[0], sT[1]
    a(f"""s_and_b32 {x}, s2, 7
    s_lshr_b32 {i}, s2, 3
    s_and_b32 {sRB}, {x}, 1
    s_lshl_b32 {sRB}, {sRB}, 3
    s_and_b32 {sT[2]}, {i}, 7
    s_add_u32 {sRB}, {sRB}, {sT[2]}
    s_lshr_b32 {sCQ}, {i}, 3
    s_lshr_b32 {sGRP}, {x}, 1
    s_mul_i32 {sT0}, {sGRP}, 27
    s_mul_i32 {sT[3]}, {sCQ}, 7
    s_add_u32 {sT0}, {sT0}, {sT[3]}
    s_lshr_b32 {sNCH}, {sCQ}, 1
    s_add_u32 {sNCH}, {sNCH}, 2
    s_mul_i32 {sCH0}, {x}, 80
    s_mul_i32 {sT[2]}, {sT[2]}, 10
    s_add_u32 {sCH0}, {sCH0}, {sT[2]}
    s_lshl_b32 {sT[3]}, {sCQ}, 1
    s_cmp_eq_u32 {sCQ}, 3
    s_cselect_b32 {sT[3]}, 7, {sT[3]}
    s_add_u32 {sCH0}, {sCH0}, {sT[3]}
    s_lshl_b32 {sTB}, {x}, 2
    s_and_b32 {sT[3]}, {i}, 3
    s_add_u32 {sTB}, {sTB}, {sT[3]}
    s_lshr_b32 {sDB}, {i}, 2
    s_and_b32 {sW}, {sWAVE}, 3
    s_cmp_ge_u32 {sWAVE}, 4
    s_cbranch_scc1 L_helper""")

def wait_kernarg(a):
    a("s_waitcnt lgkmcnt(0)")
    a(f"s_load_dword {sTAG}, {P(15)}, {WS_EPOCH}")
    srd(a, SRD_WS, 15, WS_DBG_END if (Opt.debug or Opt.dump) else WS_END)
    srd(a, SRD_X, 0, 2048 * 1280)

def finish_tag(a):
    a(f"s_waitcnt lgkmcnt(0)\ns_mul_i32 {sTAG}, {sTAG}, 1664525\ns_add_u32 {sTAG}, {sTAG}, 1013904223")

class Lgkm:
    def __init__(self, a): self.a = a; self.q = []
    def op(self, text, tag): self.a(text); self.q.append(tag)
    def wait(self, *tags):
        idx = [i for i, t in enumerate(self.q) if t in tags]
        if not idx: return
        n = min(len(self.q) - 1 - max(idx), 15)
        self.a(f"s_waitcnt lgkmcnt({n})"); self.q = self.q[len(self.q) - n:] if n else []
    def wait_all(self):
        self.a("s_waitcnt lgkmcnt(0)"); self.q = []

vWa, vWb, vSa, vSb, vX0a, vX1a, vX0b, vX1b, vM0, vM1, vHS = [f"v{i}" for i in range(1, 12)]
CS = 12
SET = {"a": dict(W=[16, 20, 24, 28], X=[32, 36]), "b": dict(W=[40, 44, 48, 52], X=[56, 60])}
ADDR = {"a": dict(W=vWa, S=vSa, X=[vX0a, vX1a]), "b": dict(W=vWb, S=vSb, X=[vX0b, vX1b])}
ACC = [64 + 16 * i for i in range(7)]
TILE = [(0, 0), (0, 1), (1, 0), (1, 1), (2, 0), (2, 1), (3, 0)]
def q4(r): return f"v[{r}:{r+3}]"
def q2(r): return f"v[{r}:{r+1}]"

def g1_reads(half, slot):
    s, ad = SET[half], ADDR[half]
    def wr(k):
        reg = ad["S"] if k == 3 else ad["W"]
        off = slot * WSLOT + (0 if k == 3 else 32 * k)
        return [((half, "W", k), f"ds_read_b64_tr_b16 {q2(s['W'][k])}, {reg} offset:{off}"),
                ((half, "W", k), f"ds_read_b64_tr_b16 {q2(s['W'][k]+2)}, {reg} offset:{off+896}")]
    def xr(k): return [((half, "X", k), f"ds_read_b128 {q4(s['X'][k])}, {ad['X'][k]} offset:{slot*XSLOT}")]
    return xr(0) + wr(0) + xr(1) + wr(1) + wr(2) + wr(3)

def g1_half(a, lg, half, reads, barrier, colsum, extra=()):
    s = SET[half]
    reads = list(reads); extra = list(extra)
    dots = []
    if barrier: lg.wait_all()
    for m, (w, x) in enumerate(TILE):
        lg.wait((half, "W", w), (half, "X", x))
        a(f"v_mfma_f32_32x32x16_bf16 v[{ACC[m]}:{ACC[m]+15}], {q4(s['W'][w])}, {q4(s['X'][x])}, v[{ACC[m]}:{ACC[m]+15}]")
        if colsum and x == 0 and not Opt.nodot:
            dots += [f"v_dot2c_f32_bf16 v{CS+w}, {sT[8]}, v{s['W'][w]+d}" for d in range(4)]
        if barrier and m == 0:
            tev(a, "pre-bar")
            a("s_barrier")
            tev(a, "post-bar")
            if callable(barrier): barrier()
            continue
        for _ in range(2):
            if reads:
                t, txt = reads.pop(0); lg.op(txt, t)
        nd = 4 if m == 6 else (2 if m < 5 else 3)
        for _ in range(nd):
            if dots: a(dots.pop(0))
        if extra and m >= 2: a(extra.pop(0))
    for d in dots: a(d)
    for t, txt in reads: lg.op(txt, t)
    for e in extra: a(e)

def gemm_waves(a):
    th, fg = sT[0], sT[1]
    a(f"s_and_b32 {th}, {sW}, 1\ns_lshr_b32 {fg}, {sW}, 1")
    a(f"""v_and_b32 v16, 15, v0
    v_lshrrev_b32 v16, 2, v16
    v_lshrrev_b32 v17, 5, v0
    v_lshl_add_u32 v16, v17, 3, v16
    v_mul_u32_u24 v16, 224, v16
    v_bfe_u32 v18, v0, 4, 1
    v_mul_u32_u24 v18, {UOFF}, v18
    v_and_b32 v19, 3, v0
    v_lshlrev_b32 v19, 3, v19
    v_add3_u32 v16, v16, v18, v19
    s_mul_i32 {sT[2]}, {th}, 3584
    s_sub_u32 {sT[3]}, 3584, {sT[2]}
    s_mul_i32 {sT[4]}, {fg}, 96
    s_add_u32 {sT[5]}, {sT[2]}, {sT[4]}
    v_add_u32 {vWa}, {sT[5]}, v16
    s_add_u32 {sT[5]}, {sT[3]}, {sT[4]}
    v_add_u32 {vWb}, {sT[5]}, v16
    s_add_u32 {sT[5]}, {sT[2]}, 192
    v_add_u32 {vSa}, {sT[5]}, v16
    s_add_u32 {sT[5]}, {sT[3]}, 192
    v_add_u32 {vSb}, {sT[5]}, v16
    v_and_b32 v18, 31, v0
    v_lshlrev_b32 v19, 6, v18
    v_bfe_u32 v20, v0, 2, 2
    s_lshl_b32 {sT[2]}, {th}, 1
    v_add_u32 v21, {sT[2]}, v17
    v_xor_b32 v22, v21, v20
    v_xor_b32 v23, 2, v22
    v_lshl_add_u32 v22, v22, 4, v19
    v_lshl_add_u32 v23, v23, 4, v19
    s_lshl_b32 {sT[2]}, {th}, 12
    s_add_u32 {sT[2]}, {sT[2]}, {XR}
    s_lshl_b32 {sT[3]}, {fg}, 11
    s_add_u32 {sT[4]}, {sT[2]}, {sT[3]}
    s_sub_u32 {sT[5]}, {sT[2]}, {sT[3]}
    s_add_u32 {sT[5]}, {sT[5]}, 2048
    v_add_u32 {vX0a}, {sT[4]}, v22
    v_add_u32 {vX1a}, {sT[5]}, v22
    v_add_u32 {vX0b}, {sT[4]}, v23
    v_add_u32 {vX1b}, {sT[5]}, v23
    v_bfe_u32 v20, v0, 4, 1
    v_mul_u32_u24 v20, 57344, v20
    v_and_b32 v21, 15, v0
    v_lshl_add_u32 v21, v17, 4, v21
    v_lshl_add_u32 {vHS}, v21, 4, v20""")
    for r in list(range(CS, CS + 4)) + list(range(64, 256)): a(f"v_mov_b32 v{r}, 0")
    wait_kernarg(a)
    srd(a, SRD_W, 12, 1728 * 1280)
    srd(a, SRD_O, 13, 2048 * 1280)
    finish_tag(a)
    a(f"s_mov_b32 {sT[8]}, {ONES}")
    lg = Lgkm(a)
    a("s_barrier")
    stamp(a, 1)
    tev_init(a, "g", "v255")
    for t, txt in g1_reads("a", 0): lg.op(txt, t)
    a(f"s_mov_b32 {sT[7]}, 4")
    a(".p2align 6"); a.label("L_g1")
    entry = list(lg.q)
    for st in range(4):
        g1_half(a, lg, "a", g1_reads("b", st), None, True)
        g1_half(a, lg, "b", g1_reads("a", (st + 1) & 3), True, False)
    assert lg.q == entry
    a(f"s_sub_u32 {sT[7]}, {sT[7]}, 1\ns_cmp_lg_u32 {sT[7]}, 0\ns_cbranch_scc1 L_g1")
    def load_means():
        a(f"""s_lshl_b32 {sT[2]}, {sRB}, 7
        s_lshl_b32 {sT[3]}, {th}, 6
        s_add_u32 {sT[2]}, {sT[2]}, {sT[3]}
        s_lshl_b32 {sT[3]}, {fg}, 5
        s_add_u32 {sT[4]}, {sT[2]}, {sT[3]}
        s_sub_u32 {sT[5]}, {sT[2]}, {sT[3]}
        s_add_u32 {sT[5]}, {sT[5]}, 32
        s_lshl_b32 {sT[4]}, {sT[4]}, 3
        s_lshl_b32 {sT[5]}, {sT[5]}, 3
        s_add_u32 {sT[4]}, {sT[4]}, {WS_STATS}
        s_add_u32 {sT[5]}, {sT[5]}, {WS_STATS}
        v_and_b32 {vM1}, 31, v0
        v_lshlrev_b32 {vM1}, 3, {vM1}""")
        a.vm(f"buffer_load_dword {vM0}, {vM1}, {SRD_WS}, {sT[4]} offen sc1", "m")
        a.vm(f"buffer_load_dword {vM1}, {vM1}, {SRD_WS}, {sT[5]} offen sc1", "m")
    for st in range(16, 19):
        g1_half(a, lg, "a", g1_reads("b", st & 3), None, True)
        g1_half(a, lg, "b", g1_reads("a", (st + 1) & 3), load_means if st == 17 else True, False)
    g1_half(a, lg, "a", g1_reads("b", 3), None, True)
    a(f"s_xor_b32 {sT[2]}, {sW}, 1\ns_mul_i32 {sT[2]}, {sT[2]}, {G2R}\nv_lshlrev_b32 v17, 4, v0\nv_add_u32 v16, {sT[2]}, v17")
    lg.op(f"ds_write_b128 v16, {q4(CS)}", "cs")
    a(f"s_mul_i32 {sT[2]}, {sW}, {G2R}\nv_add_u32 v16, {sT[2]}, v17")
    def part():
        lg.op(f"ds_read_b128 {q4(20)}, v16", "cs2")
    zero = [f"v_mov_b32 v{r}, 0" for r in (17, 18, 19, 25, 26, 27, 29, 30, 31, 33, 34, 35, 37, 38, 39)]
    g1_half(a, lg, "b", [], part, False, extra=[])
    stamp(a, 2)
    lg.wait("cs2")
    for k in range(4): a(f"v_add_f32 v{CS+k}, v{CS+k}, v{20+k}")
    for z in zero: a(z)
    a("v_mov_b32 v21, 0\nv_mov_b32 v22, 0\nv_mov_b32 v23, 0")
    for k in range(4):
        d = SET["a"]["W"][k]
        a(f"""v_cvt_pk_bf16_f32 v40, v{CS+k}, v{CS+k}
        v_lshlrev_b32 v40, 16, v40
        v_sub_f32 v40, v{CS+k}, v40
        v_cvt_pk_bf16_f32 v{d}, v{CS+k}, v40""")
    a.wait_vm("m")
    a(f"v_mov_b32 v32, {vM0}\nv_mov_b32 v36, {vM1}")
    for m, (w, x) in enumerate(TILE):
        a(f"v_mfma_f32_32x32x16_bf16 v[{ACC[m]}:{ACC[m]+15}], {q4(SET['a']['W'][w])}, {q4(SET['a']['X'][x])}, v[{ACC[m]}:{ACC[m]+15}]")
    sH0, sH1, sHS = sT[2], sT[3], sT[4]
    a(f"""s_lshl_b32 {sT[5]}, {sRB}, 3
    s_lshl_b32 {sT[6]}, {th}, 2
    s_add_u32 {sT[5]}, {sT[5]}, {sT[6]}
    s_mul_i32 {sT[5]}, {sT[5]}, 57344
    s_mul_i32 {sT[6]}, {sGRP}, 14336
    s_add_u32 {sT[5]}, {sT[5]}, {sT[6]}
    s_mul_i32 {sT[6]}, {sCQ}, 3584
    s_add_u32 {sT[5]}, {sT[5]}, {sT[6]}
    s_add_u32 {sT[5]}, {sT[5]}, {WS_H}
    s_mul_i32 {sT[6]}, {fg}, 114688
    s_add_u32 {sHS}, {sT[5]}, {sT[6]}
    s_sub_u32 {sH1}, {sT[5]}, {sT[6]}
    s_add_u32 {sH1}, {sH1}, 114688
    s_mul_i32 {sT[6]}, {fg}, 1536
    s_add_u32 {sH0}, {sHS}, {sT[6]}
    s_add_u32 {sH1}, {sH1}, {sT[6]}
    s_add_u32 {sHS}, {sHS}, 3072
    s_cmp_eq_u32 {sCQ}, 3
    s_cselect_b32 {sHS}, 0x40000000, {sHS}""")
    for m, (w, x) in enumerate(TILE):
        b = ACC[m]; o = 40 + 4 * (m & 1)
        for r in range(8): a(f"v_max_f32 v{b+r}, 0, v{b+r}")
        for r in range(8): a(f"v_mul_f32 v{b+r}, v{b+r}, v{b+8+r}")
        for r in range(4): a(f"v_cvt_pk_bf16_f32 v{o+r}, v{b+2*r}, v{b+2*r+1}")
        so = sHS if w == 3 else (sH0, sH1)[x]
        a.vm(f"buffer_store_dwordx4 {q4(o)}, {vHS}, {SRD_WS}, {so} offen offset:{0 if w == 3 else 512*w} sc1", "h")
    sFB = sT[2]
    a(f"""s_lshl_b32 {sT[5]}, {sRB}, 1
    s_add_u32 {sT[5]}, {sT[5]}, {th}
    s_lshl_b32 {sT[5]}, {sT[5]}, 4
    s_lshl_b32 {sT[6]}, {sGRP}, 2
    s_add_u32 {sT[5]}, {sT[5]}, {sT[6]}
    s_add_u32 {sT[5]}, {sT[5]}, {sCQ}
    s_lshl_b32 {sT[5]}, {sT[5]}, 1
    s_add_u32 {sT[5]}, {sT[5]}, {fg}
    s_lshl_b32 {sFB}, {sT[5]}, 2
    s_add_u32 {sFB}, {sFB}, {WS_FLAGB}""")
    stamp(a, 3)
    if Opt.prof:
        a("v_mov_b32 v174, v255\nv_mov_b32 v255, 0"); Ev.reg = "v174"
    tev(a, "epilogue")
    gemm2(a, lg, sFB)

def gemm2(a, lg, sFB):
    vD = [f"v{i}" for i in range(1, 6)]; vH = [f"v{i}" for i in range(6, 10)]; vR = "v10"
    WS_ = [64 + 20 * i for i in range(5)]; HS_ = [16 + 16 * i for i in range(3)]
    A2 = lambda s, j: 176 + 20 * s + 4 * j
    sM, sWo, sHo = sT[3], sT[4], sT[5]
    a(f"s_mul_i32 {sT[6]}, {sDB}, 160\ns_mov_b32 {sT[7]}, 6554")
    for q in range(5):
        a(f"""v_add_u32 v12, {64*q}, v0
        v_mul_u32_u24 v13, {sT[7]}, v12
        v_lshrrev_b32 v13, 16, v13
        v_mul_u32_u24 v14, 10, v13
        v_sub_u32 v14, v12, v14
        v_mul_u32_u24 v13, 1280, v13
        v_lshl_add_u32 v13, v14, 4, v13
        v_add_u32 {vD[q]}, {sT[6]}, v13""")
        if 0 < q < 4: a(f"v_subrev_u32 {vD[q]}, {1024*q}, {vD[q]}")
    a(f"s_mul_i32 {sM}, {sW}, {G2R}\ns_mul_i32 {sWo}, {sW}, {432*1280}")
    def dma(ks):
        slot = ks & 3
        a(f"s_add_u32 m0, {sM}, {slot*5120}")
        for q in range(4): a.vm(f"buffer_load_dwordx4 {vD[q]}, {SRD_W}, {sWo} offen offset:{1024*q} lds", ("W", ks))
        a(f"s_add_u32 m0, {sM}, {slot*5120+4096}")
        a.vm(f"buffer_load_dwordx4 {vD[4]}, {SRD_W}, {sWo} offen lds", ("W", ks))
        a(f"s_add_u32 {sWo}, {sWo}, {32*1280}")
    def wreads(ks):
        return [(("W", ks), f"ds_read_b64_tr_b16 {q2(WS_[ks % 5]+4*j+2*h)}, {vR} offset:{(ks & 3)*5120+32*j+1280*h}") for j in range(5) for h in range(2)]
    for ks in range(4): dma(ks)
    a(f"""v_lshrrev_b32 v12, 5, v0
    v_lshlrev_b32 v12, 4, v12
    v_bfe_u32 v13, v0, 4, 1
    v_lshl_add_u32 v12, v13, 2, v12
    v_bfe_u32 v13, v0, 2, 2
    v_add_u32 v12, v12, v13
    v_mul_u32_u24 v12, 160, v12
    v_and_b32 v13, 3, v0
    v_lshl_add_u32 v12, v13, 3, v12
    v_add_u32 {vR}, {sM}, v12
    v_lshlrev_b32 v12, 4, v0""")
    for s in range(4):
        a(f"""s_add_u32 {sT[6]}, {sW}, {s}
        s_and_b32 {sT[6]}, {sT[6]}, 3
        s_lshl_b32 {sT[7]}, {sTB}, 2
        s_add_u32 {sT[6]}, {sT[6]}, {sT[7]}
        s_mul_i32 {sT[6]}, {sT[6]}, 57344
        v_add_u32 {vH[s]}, {sT[6]}, v12""")
    a.wait_vm("h")
    a(f"v_mov_b32 v12, {sTAG}\nv_mov_b32 v13, 0\ns_mov_b64 exec, 1")
    a.vm(f"buffer_store_dword v12, v13, {SRD_WS}, {sFB} offen sc0 sc1", "flag")
    a("s_mov_b64 exec, -1")
    stamp(a, 4)
    tev(a, "flagB")
    for ks in range(5):
        a.wait_vm(("W", ks))
        for t, txt in wreads(ks): lg.op(txt, t)
        lg.wait_all()
        dma(ks + 4)
    a(f"""s_lshl_b32 {sT[6]}, {sTB}, 4
    s_lshl_b32 {sT[7]}, {sW}, 2
    s_add_u32 {sT[6]}, {sT[6]}, {sT[7]}
    s_lshl_b32 {sT[6]}, {sT[6]}, 3
    s_add_u32 {sT[6]}, {sT[6]}, {WS_FLAGB}
    v_and_b32 v13, 7, v0
    v_lshlrev_b32 v13, 2, v13""")
    stamp(a, 5)
    tev(a, "Wpre")
    spin_flags(a, f"buffer_load_dword v12, v13, {SRD_WS}, {sT[6]} offen sc0 sc1", f"v_cmp_ne_u32 vcc, {sTAG}, v12", "pollb")
    stamp(a, 6)
    tev(a, "hseen")
    a(f"s_mul_i32 {sHo}, {sW}, 14336\ns_add_u32 {sHo}, {sHo}, {WS_H}")
    def hload(ks):
        if ks == 13:
            a("v_cmp_lt_u32 vcc, 31, v0\nv_mov_b32 v12, 0x40000000")
            for s in range(4): a(f"v_cndmask_b32 {vH[s]}, {vH[s]}, v12, vcc")
        for s in range(4):
            a.vm(f"buffer_load_dwordx4 {q4(HS_[ks % 3]+4*s)}, {vH[s]}, {SRD_WS}, {sHo} offen sc1", ("H", ks, s))
        a(f"s_add_u32 {sHo}, {sHo}, 1024")
    for ks in range(3): hload(ks)
    XV, YV, vR2 = WS_[4], WS_[4] + 10, "v164"
    for ks in range(14):
        side = []
        if 1 <= ks <= 9:
            kk = ks + 4
            side.append(("waitW", kk))
            side += wreads(kk)
        if 1 <= ks <= 5: side.append(("dma", ks + 8))
        for s in range(4):
            a.wait_vm(("H", ks, s))
            for j in range(5):
                if s == 0 and j == 0 and ks >= 5: lg.wait(("W", ks))
                a(f"v_mfma_f32_16x16x32_bf16 {q4(A2(s, j))}, {q4(WS_[ks % 5]+4*j)}, {q4(HS_[ks % 3]+4*s)}, {q4(A2(s, j))}")
                if side and side[0][0] != "dma":
                    e = side.pop(0)
                    if e[0] == "waitW":
                        if ("W", e[1]) in a.vq: a.wait_vm(("W", e[1]))
                    else: lg.op(e[1], e[0])
        if side:
            lg.wait_all(); dma(side.pop(0)[1])
        if ks + 3 <= 13: hload(ks + 3)
        if Opt.prof and ks in (0, 4, 9, 10):
            keep = list(lg.q); tev(a, f"ks{ks}"); lg.q = []
        if ks == 10:
            a(f"""s_mul_i32 {sT[6]}, {sDB}, 320
            s_add_u32 {sT[6]}, {sT[6]}, {WS_FLAGC}
            v_min_u32 v14, 39, v0
            v_lshlrev_b32 v14, 3, v14""")
            stamp(a, 7)
            spin_flags(a, f"buffer_load_dwordx2 v[12:13], v14, {SRD_WS}, {sT[6]} offen sc0 sc1",
                       f"v_xor_b32 v12, {sTAG}, v12\nv_xor_b32 v13, {sTAG}, v13\nv_or_b32 v12, v12, v13\nv_cmp_ne_u32 vcc, 0, v12", "pollc")
            a(f"""s_mul_i32 {sT[6]}, {sDB}, {80*4096}
            s_lshl_b32 {sT[7]}, {sTB}, 7
            s_add_u32 {sT[6]}, {sT[6]}, {sT[7]}
            s_lshl_b32 {sT[7]}, {sW}, 5
            s_add_u32 {sT[6]}, {sT[6]}, {sT[7]}
            s_add_u32 {sT[6]}, {sT[6]}, {WS_Y}
            v_lshrrev_b32 v12, 1, v0
            v_and_b32 v13, 1, v0
            v_lshlrev_b32 v13, 4, v13
            v_lshl_add_u32 v14, v12, 12, v13
            v_add_u32 v15, {32*4096-1024}, v14
            v_min_u32 v12, 15, v12
            v_lshl_add_u32 v12, v12, 12, v13
            v_add_u32 v12, {64*4096-2048}, v12
            s_mov_b32 m0, {sM}""")
            lg.wait(("W", 12))
            a.vm(f"buffer_load_dwordx4 v14, {SRD_WS}, {sT[6]} offen sc1 lds", "y")
            a.vm(f"buffer_load_dwordx4 v15, {SRD_WS}, {sT[6]} offen offset:1024 sc1 lds", "y")
            a.vm(f"buffer_load_dwordx4 v12, {SRD_WS}, {sT[6]} offen offset:2048 sc1 lds", "y")
            a(f"""s_lshl_b32 {sT[6]}, {sTB}, 6
            s_lshl_b32 {sT[7]}, {sW}, 4
            s_add_u32 {sT[6]}, {sT[6]}, {sT[7]}
            v_and_b32 v12, 15, v0
            v_add_u32 v12, {sT[6]}, v12
            v_lshlrev_b32 v13, 3, v12
            v_mul_u32_u24 v12, 1280, v12
            v_lshrrev_b32 v14, 4, v0
            v_lshl_add_u32 v12, v14, 3, v12
            s_mul_i32 {sT[6]}, {sDB}, 160
            v_add_u32 v165, {sT[6]}, v12
            s_mov_b32 {sT[7]}, {WS_STATS+4}""")
            a.vm(f"buffer_load_dword {vR2}, v13, {SRD_WS}, {sT[7]} offen sc1", "x")
            for j in range(5):
                a.vm(f"buffer_load_dwordx2 {q2(XV+2*j)}, v165, {SRD_X}, 0 offen offset:{32*j}", "x")
    stamp(a, 8)
    tev(a, "g2done")
    a(f"v_lshlrev_b32 v12, 4, v0\nv_add_u32 v13, {sM}, v12")
    for s in range(1, 4):
        for j in range(5): lg.op(f"ds_write_b128 v13, {q4(A2(s, j))} offset:{s*5120+1024*j}", "red")
    a.wait_vm("y")
    a(f"""v_bfe_u32 v14, v0, 2, 4
    v_lshlrev_b32 v14, 5, v14
    v_and_b32 v15, 3, v0
    v_lshl_add_u32 v14, v15, 3, v14
    v_add_u32 v14, {sM}, v14""")
    for j in range(5): lg.op(f"ds_read_b64_tr_b16 {q2(YV+2*j)}, v14 offset:{512*j}", "y")
    lg.wait_all()
    tev(a, "red-wr")
    a("s_barrier")
    tev(a, "red-bar")
    RB = [16, 36, 64]
    for s in range(1, 4):
        a(f"""s_sub_u32 {sT[6]}, {sW}, {s}
        s_and_b32 {sT[6]}, {sT[6]}, 3
        s_mul_i32 {sT[6]}, {sT[6]}, {G2R}
        v_add_u32 v13, {sT[6]}, v12""")
        for j in range(5): lg.op(f"ds_read_b128 {q4(RB[s-1]+4*j)}, v13 offset:{s*5120+1024*j}", ("r", s))
    for s in range(1, 4):
        lg.wait(("r", s))
        for r in range(20): a(f"v_add_f32 v{176+r}, v{176+r}, v{RB[s-1]+r}")
    a.wait_vm("x")
    a("s_mov_b32 %s, 0xffff0000" % sT[6])
    for j in range(5):
        o = 84 + 2 * j
        a(f"""v_lshlrev_b32 v16, 16, v{YV+2*j}
        v_and_b32 v17, {sT[6]}, v{YV+2*j}
        v_lshlrev_b32 v18, 16, v{YV+2*j+1}
        v_and_b32 v19, {sT[6]}, v{YV+2*j+1}
        v_lshlrev_b32 v20, 16, v{XV+2*j}
        v_and_b32 v21, {sT[6]}, v{XV+2*j}
        v_lshlrev_b32 v22, 16, v{XV+2*j+1}
        v_and_b32 v23, {sT[6]}, v{XV+2*j+1}""")
        for r in range(4): a(f"v_add_f32 v{16+r}, v{16+r}, v{20+r}")
        for r in range(4): a(f"v_fmac_f32 v{16+r}, {vR2}, v{176+4*j+r}")
        a(f"v_cvt_pk_bf16_f32 v{o}, v16, v17\nv_cvt_pk_bf16_f32 v{o+1}, v18, v19")
        a.vm(f"buffer_store_dwordx2 {q2(o)}, v165, {SRD_O}, 0 offen offset:{32*j}", "o")
    if Opt.debug:
        a.wait_vm_all(); stamp(a, 9); tev(a, 'end'); dump_stamps(a, 10)
    a("s_endpgm")

vDW = [f"v{i}" for i in range(1, 5)]; vDX = ["v5", "v6"]
sWm, sXm, sWo_, sXo, sSL, sIT = "s77", "s78", "s79", "s3", "s4", "s5"
sK = [sT[5], sT[6], "s0"]; sD = ["s1", sT[7], sT[8]]

def issue_stage(a, tagged):
    if Opt.nodma and tagged not in ("s0", "s1", "s2", "s3"):
        a.vq += [tagged] * 6
        return
    a(f"s_mov_b32 m0, {sWm}")
    for q in range(3): a.vm(f"buffer_load_dwordx4 {vDW[q]}, {SRD_W}, {sWo_} offen offset:{1024*q} lds", tagged)
    a("s_mov_b32 exec_hi, 0")
    a.vm(f"buffer_load_dwordx4 {vDW[3]}, {SRD_W}, {sWo_} offen offset:3072 lds", tagged)
    a(f"s_mov_b32 exec_hi, -1\ns_mov_b32 m0, {sXm}")
    for q in range(2): a.vm(f"buffer_load_dwordx4 {vDX[q]}, {SRD_X}, {sXo} offen offset:{1024*q} lds", tagged)
    a(f"""s_add_u32 {sWo_}, {sWo_}, {32*3456}
    s_add_u32 {sXo}, {sXo}, 64
    s_add_u32 {sSL}, {sSL}, 1
    s_and_b32 {sSL}, {sSL}, 3
    s_mul_i32 {sWm}, {sSL}, {WSLOT}
    s_add_u32 {sWm}, {sWm}, s6
    s_lshl_b32 {sXm}, {sSL}, 13
    s_add_u32 {sXm}, {sXm}, s7""")

def duty(a, n, issue=True, lgkm=False, name=""):
    tev(a, "chunk" + name)
    a(f"s_waitcnt vmcnt({n})" + (" lgkmcnt(0)" if lgkm else ""))
    tev(a, "vmw")
    a("s_barrier")
    tev(a, "bar")
    if issue: issue_stage(a, None)
    tev(a, "issue")

def spin_lds(a, k, target=None):
    L = a.newlabel("spin"); E = a.newlabel("spin_ok")
    a(f"""s_waitcnt lgkmcnt(0)
    v_mov_b32 v7, {CNT + 4*k}
    v_mov_b32 v154, 1
    s_mov_b64 exec, 1
    ds_add_u32 v7, v154
    s_mov_b64 exec, -1
    s_mov_b32 {sSPIN}, {SPIN_MAX}""")
    a(target or f"s_mov_b32 {sT[1]}, 4")
    a.label(L)
    a(f"""ds_read_b32 v154, v7
    s_waitcnt lgkmcnt(0)
    v_readfirstlane_b32 {sT[0]}, v154
    s_cmp_ge_u32 {sT[0]}, {sT[1]}
    s_cbranch_scc1 {E}
    s_sub_u32 {sSPIN}, {sSPIN}, 1
    s_cmp_lg_u32 {sSPIN}, 0
    s_cbranch_scc1 {L}""")
    a.label(E)

def row_sum32(a, v, t):
    for sh in (8, 4, 2, 1): a(f"v_add_f32_dpp {v}, {v}, {v} row_ror:{sh} row_mask:0xf bank_mask:0xf")
    a(f"v_mov_b32 {t}, {v}\nv_permlane16_swap_b32 {v}, {t}\nv_add_f32 {v}, {v}, {t}")

def round_bf16(a, dst, src):
    a(f"v_cvt_pk_bf16_f32 {dst}, {src}, {src}\nv_lshlrev_b32 {dst}, 16, {dst}")

vHL, vH1, vH2, vH3, vPA, vPA3, vPW, vPR = [f"v{i}" for i in range(62, 70)]
vTA = ["v70", "v71", "v72", "v85"]
GI = list(range(73, 84)); vEX = "v84"
LF = [88, 92]; R1F = [96, 100]; R2F = [104, 108]; R3F = 112
D1, D2, D3A, D3B = 116, 120, 124, 128
PSET = [dict(P=[132, 136], P3=140), dict(P=[144, 148], P3=152)]

def param_round(a, base, rnd):
    ar, ai, br, bi, cr, ci, ld, dk = [f"v{base+i}" for i in range(8)]
    for r in (ar, ai, br, bi, cr, ci, ld, dk): a(f"v_lshlrev_b32 {r}, 16, {r}")
    a(f"v_mul_f32 {ld}, {LOG2E}, {ld}\nv_exp_f32 {ld}, {ld}")
    round_bf16(a, ld, ld)
    a(f"""v_mul_f32 v156, {ld}, {ar}
    v_mul_f32 v156, {LOG2E}, v156
    v_mul_f32 v157, {ld}, {ai}
    v_mul_f32 v157, {INV2PI}, v157
    v_rndne_f32 v160, v157
    v_sub_f32 v157, v157, v160
    v_mul_f32 {br}, {ld}, {br}
    v_mul_f32 {bi}, {ld}, {bi}
    v_mul_f32 v158, {cr}, {br}
    v_fma_f32 v158, -{ci}, {bi}, v158
    v_mul_f32 v159, {cr}, {bi}
    v_fma_f32 v159, -{ci}, {br}, -v159
    v_mul_f32 v160, 0x45000000, v156
    v_mul_f32 v161, 0x45000000, v157
    v_fract_f32 v161, v161
    v_exp_f32 v160, v160
    v_sin_f32 v162, v161
    v_cos_f32 v161, v161""")
    a(f"""v_and_b32 v163, 31, v0
    v_lshlrev_b32 v163, 4, v163
    s_mul_i32 {sT[0]}, {sW}, {KCP}
    s_add_u32 {sT[0]}, {sT[0]}, {PB + (1024 if rnd else 0)}
    v_add_u32 v163, {sT[0]}, v163""")
    if rnd == 0:
        a("v_lshrrev_b32 v164, 5, v0\nv_lshl_add_u32 v163, v164, 9, v163")
    a(f"""ds_write_b128 v163, v[156:159]
    v_mul_f32 v161, v158, v161
    v_fmac_f32 v161, v159, v162
    v_mul_f32 v161, v160, v161""")
    row_sum32(a, "v161", "v162")
    a(f"s_cmp_eq_u32 {sW}, 0\ns_cselect_b64 vcc, -1, 0\nv_cndmask_b32 {dk}, 0, {dk}, vcc")
    if rnd == 0:
        a(f"v_readlane_b32 {sK[0]}, v161, 0\nv_readlane_b32 {sK[1]}, v161, 32\nv_readlane_b32 {sD[0]}, {dk}, 0\nv_readlane_b32 {sD[1]}, {dk}, 32")
    else:
        a(f"v_readlane_b32 {sK[2]}, v161, 0\nv_readlane_b32 {sD[2]}, {dk}, 0")

def kgen_reads(q, ps):
    return [f"ds_read_b128 {q4(ps['P'][0])}, {vPA} offset:{16*q}",
            f"ds_read_b128 {q4(ps['P'][1])}, {vPA} offset:{256+16*q}",
            f"ds_read_b64 {q2(ps['P3'])}, {vPA3} offset:{16*q}"]

def kgen_unit(a, q):
    ps = PSET[q & 1]
    a("s_waitcnt lgkmcnt(0)")
    if q < 3:
        for r in kgen_reads(q + 1, PSET[(q + 1) & 1]): a(r)
    evs = []
    T = 156
    for ks in range(2):
        p = ps["P"][ks]
        evs.append((vHL, p, False, LF[ks] + q, (p + 2, p + 3)))
        evs.append((vH1, p, False, R1F[ks] + q, None))
        evs.append((vH2, p, True, R2F[ks] + q, None))
    evs.append((vH3, ps["P3"], True, R3F + q, None))
    for grp in (evs[0:4], evs[4:7]):
        t = [(T + 4 * i, T + 4 * i + 1, T + 4 * i + 2, T + 4 * i + 3) for i in range(len(grp))]
        for (H, p, fr, d, w), (e, ph, s, u) in zip(grp, t): a(f"v_mul_f32 v{e}, {H}, v{p}\nv_mul_f32 v{ph}, {H}, v{p+1}")
        for (H, p, fr, d, w), (e, ph, s, u) in zip(grp, t):
            if fr: a(f"v_fract_f32 v{ph}, v{ph}")
        for (H, p, fr, d, w), (e, ph, s, u) in zip(grp, t): a(f"v_exp_f32 v{e}, v{e}\nv_sin_f32 v{s}, v{ph}\nv_cos_f32 v{ph}, v{ph}")
        for (H, p, fr, d, w), (e, ph, s, u) in zip(grp, t): a(f"v_mul_f32 v{s}, v{e}, v{s}\nv_mul_f32 v{ph}, v{e}, v{ph}")
        for (H, p, fr, d, w), (e, ph, s, u) in zip(grp, t):
            if w:
                a(f"""v_mul_f32 v{e}, v{w[0]}, v{ph}
                v_mul_f32 v{u}, v{w[1]}, v{ph}
                v_fmac_f32 v{e}, v{w[1]}, v{s}
                v_fma_f32 v{u}, -v{w[0]}, v{s}, v{u}""")
        for (H, p, fr, d, w), (e, ph, s, u) in zip(grp, t):
            a(f"v_cvt_pk_bf16_f32 v{d}, v{e}, v{u}" if w else f"v_cvt_pk_bf16_f32 v{d}, v{ph}, v{s}")

def kgen_finish(a):
    mf = "v_mfma_f32_16x16x32_bf16"
    a(f"""{mf} {q4(D3B)}, {q4(R3F)}, {q4(LF[1])}, 0
    {mf} {q4(D3A)}, {q4(R3F)}, {q4(LF[0])}, 0
    {mf} {q4(D1)}, {q4(R1F[0])}, {q4(LF[0])}, 0
    {mf} {q4(D2)}, {q4(R2F[0])}, {q4(LF[0])}, 0
    {mf} {q4(D1)}, {q4(R1F[1])}, {q4(LF[1])}, {q4(D1)}
    {mf} {q4(D2)}, {q4(R2F[1])}, {q4(LF[1])}, {q4(D2)}
    v_mov_b32 v160, {sK[0]}
    v_cmp_eq_u32 vcc, 0, v0
    v_mov_b32 v156, {sD[0]}
    v_cndmask_b32 v156, 0, v156, vcc
    ds_write_b128 {vPW}, v[160:163] offset:3072""")
    for r in range(4): a(f"v_permlane32_swap_b32 v{D3B+r}, v{164+r}")
    for r in range(4): a(f"v_add_f32 v{D3A+r}, v{D3A+r}, v{164+r}")
    a(f"""ds_write_b128 {vPW}, {q4(D3A)} offset:2048
    v_add_f32 v{D1}, v{D1}, v156
    ds_write_b128 {vPW}, {q4(D1)}
    ds_write_b128 {vPW}, {q4(D2)} offset:1024""")

def kgen_reduce(a):
    for c in range(4): a(f"ds_read_b128 {q4(156+4*c)}, {vPR} offset:{KCP*c}")
    a(f"v_add_u32 {vPW}, {KCS}, {vPW}\nv_add_u32 {vPR}, {KCS}, {vPR}")
    a(f"v_add_u32 {vPA}, 512, {vPA}\nv_add_u32 {vPA3}, 512, {vPA3}")
    a(f"s_mov_b32 {sK[0]}, {sK[1]}\ns_mov_b32 {sK[1]}, {sK[2]}\ns_mov_b32 {sD[0]}, {sD[1]}\ns_mov_b32 {sD[1]}, {sD[2]}")
    a("s_waitcnt lgkmcnt(2)")
    for r in range(4): a(f"v_add_f32 v{156+r}, v{156+r}, v{160+r}")
    a("s_waitcnt lgkmcnt(0)")
    for r in range(4): a(f"v_add_f32 v{164+r}, v{164+r}, v{168+r}")
    for r in range(4): a(f"v_add_f32 v{156+r}, v{156+r}, v{164+r}")
    for r in range(4): a(f"ds_write_b32 {vTA[r]}, v{156+r}")
    for r in range(4): a(f"v_add_u32 {vTA[r]}, {TBS}, {vTA[r]}")

def kgen_expand(a):
    V = {k: 156 + (3 - k) for k in range(3, -8, -1)}
    for n, k in enumerate(range(3, -8, -1)): a(f"ds_read_b32 v{V[k]}, v{GI[n]}")
    for n in range(11): a(f"v_add_u32 v{GI[n]}, {TBS}, v{GI[n]}")
    a("s_waitcnt lgkmcnt(0)")
    for c in range(4):
        o = 168 + 4 * c
        for i in range(4): a(f"v_cvt_pk_bf16_f32 v{o+i}, v{V[c-2*i]}, v{V[c-2*i-1]}")
        a(f"ds_write_b128 {vEX}, {q4(o)} offset:{KCP*c}")
    a(f"v_add_u32 {vEX}, {KCS}, {vEX}")

def helper_waves(a):
    a.label("L_helper")
    a.vq = []
    a(f"s_mov_b32 {sT[7]}, 4682\ns_and_b32 {sT[2]}, {sW}, 1\ns_mul_i32 {sT[3]}, {sT[2]}, {16*3456}\ns_lshl_b32 {sT[4]}, {sT0}, 5\ns_add_u32 {sT[3]}, {sT[3]}, {sT[4]}")
    for q in range(4):
        a(f"""v_add_u32 v8, {64*q}, v0
        v_mul_u32_u24 v9, {sT[7]}, v8
        v_lshrrev_b32 v9, 16, v9
        v_mul_u32_u24 v10, 14, v9
        v_sub_u32 v10, v8, v10
        v_mul_u32_u24 v9, 3456, v9
        v_lshl_add_u32 v9, v10, 4, v9
        v_add_u32 {vDW[q]}, {sT[3]}, v9""")
        if q: a(f"v_subrev_u32 {vDW[q]}, {1024*q}, {vDW[q]}")
    a(f"""v_lshrrev_b32 v8, 2, v0
    v_mul_u32_u24 v8, 1280, v8
    v_bfe_u32 v9, v0, 4, 2
    v_xor_b32 v9, v9, v0
    v_and_b32 v9, 3, v9
    v_lshl_add_u32 v8, v9, 4, v8
    s_lshl_b32 {sT[3]}, {sRB}, 7
    s_lshl_b32 {sT[4]}, {sW}, 5
    s_add_u32 {sT[3]}, {sT[3]}, {sT[4]}
    s_mul_i32 {sT[3]}, {sT[3]}, 1280
    v_add_u32 {vDX[0]}, {sT[3]}, v8
    v_add_u32 {vDX[1]}, {16*1280-1024}, {vDX[0]}
    s_mul_i32 {sWm}, {sT[2]}, 3584
    s_lshr_b32 {sT[4]}, {sW}, 1
    s_mul_i32 {sT[4]}, {sT[4]}, {UOFF}
    s_add_u32 {sWm}, {sWm}, {sT[4]}
    s_lshl_b32 {sXm}, {sW}, 11
    s_add_u32 {sXm}, {sXm}, {XR}
    s_mov_b32 s6, {sWm}
    s_mov_b32 s7, {sXm}
    s_mov_b32 {sWo_}, 0
    s_mov_b32 {sXo}, 0
    s_mov_b32 {sSL}, 0
    v_lshrrev_b32 v8, 5, v0
    s_lshl_b32 {sT[3]}, s2, 3
    s_lshl_b32 {sT[4]}, {sW}, 1
    s_add_u32 {sT[3]}, {sT[3]}, {sT[4]}
    v_add_u32 v45, {sT[3]}, v8
    v_mul_u32_u24 v9, 1280, v45
    v_and_b32 v10, 31, v0
    v_mul_u32_u24 v11, 40, v10
    v_add_u32 v7, v9, v11
    v_add_u32 v44, {sCH0}, v8
    v_lshlrev_b32 v43, 8, v44
    s_lshl_b32 {sT[4]}, {sW}, 6
    v_lshl_add_u32 v43, v10, 1, v43
    v_add_u32 v43, {sT[4]}, v43
    v_lshlrev_b32 v44, 1, v44
    s_add_u32 {sT[3]}, {sCH0}, 2
    s_min_u32 {sT[3]}, {sT[3]}, 639
    s_lshl_b32 {sT[5]}, {sT[3]}, 8
    s_add_u32 {sT[5]}, {sT[5]}, {sT[4]}
    v_lshlrev_b32 v42, 1, v10
    v_add_u32 v42, {sT[5]}, v42
    s_lshl_b32 {sT[3]}, {sT[3]}, 1
    v_mov_b32 v41, {sT[3]}""")
    wait_kernarg(a)
    a(f"""s_cmp_lt_u32 {sW}, 2
    s_cselect_b32 s48, {Plo(10)}, {Plo(11)}
    s_cselect_b32 s49, {Phi(10)}, {Phi(11)}
    s_and_b32 s49, s49, 0xffff
    s_mov_b32 s50, {640*3456}
    s_mov_b32 s51, 0x20000""")
    issue_stage(a, "s0")
    a.vm(f"buffer_load_dwordx4 v[8:11], v7, {SRD_X}, 0 offen", "ln")
    a.vm(f"buffer_load_dwordx4 v[12:15], v7, {SRD_X}, 0 offen offset:16", "ln")
    a.vm(f"buffer_load_dwordx2 v[16:17], v7, {SRD_X}, 0 offen offset:32", "ln")
    for rnd, (vo, vc) in enumerate((("v43", "v44"), ("v42", "v41"))):
        for i in range(6): a.vm(f"global_load_ushort v{46+8*rnd+i}, {vo}, {P(1+i)}", "par")
        a.vm(f"global_load_ushort v{52+8*rnd}, {vc}, {P(7)}", "par")
        a.vm(f"global_load_ushort v{53+8*rnd}, {vc}, {P(8)}", "par")
    for s in (1, 2, 3): issue_stage(a, f"s{s}")
    a(f"""v_mov_b32 v20, 0
    v_mov_b32 v21, 0
    v_mov_b32 v22, 0
    v_mov_b32 v23, 0
    v_lshlrev_b32 v24, 4, v0
    s_lshl_b32 {sT[3]}, {sW}, 11
    s_add_u32 {sT[3]}, {sT[3]}, {TB}
    v_add_u32 v24, {sT[3]}, v24
    ds_write_b128 v24, v[20:23]
    ds_write_b128 v24, v[20:23] offset:1024
    v_lshrrev_b32 v24, 1, v0
    v_min_u32 v24, 11, v24
    v_mul_u32_u24 v24, {KCP}, v24
    v_and_b32 v25, 1, v0
    v_lshl_add_u32 v24, v25, 4, v24
    v_add_u32 v24, {KC+4096}, v24
    ds_write_b128 v24, v[20:23]""")
    finish_tag(a)
    a.wait_vm("s0"); a("s_barrier")
    stamp(a, 1)
    tev_init(a, "h", "v254")
    a.wait_vm("ln")
    a(f"s_mov_b32 {sT[3]}, {ONES}\ns_mov_b32 {sT[4]}, 0xffff0000\nv_mov_b32 v38, 0\nv_mov_b32 v39, 0")
    for i in range(10): a(f"v_dot2c_f32_bf16 v{38+(i&1)}, {sT[3]}, v{8+i}")
    a("v_add_f32 v38, v38, v39")
    for i in range(10): a(f"v_lshlrev_b32 v{18+2*i}, 16, v{8+i}\nv_and_b32 v{19+2*i}, {sT[4]}, v{8+i}")
    row_sum32(a, "v38", "v39")
    a("v_mul_f32 v38, 0x3acccccd, v38\nv_mov_b32 v39, 0\nv_mov_b32 v40, 0")
    for i in range(10):
        a(f"v_sub_f32 v8, v{18+2*i}, v38\nv_sub_f32 v9, v{19+2*i}, v38\nv_fmac_f32 v39, v8, v8\nv_fmac_f32 v40, v9, v9")
    a("v_add_f32 v39, v39, v40")
    row_sum32(a, "v39", "v40")
    a("v_mul_f32 v39, 0x3acccccd, v39")
    round_bf16(a, "v39", "v39")
    a("v_add_f32 v39, 0x3727c5ac, v39")
    round_bf16(a, "v39", "v39")
    a("v_sqrt_f32 v39, v39")
    round_bf16(a, "v39", "v39")
    a("v_rcp_f32 v39, v39\nv_cvt_pk_bf16_f32 v40, v38, v38\nv_lshlrev_b32 v38, 16, v40")
    tev(a, "pro1"); a.wait_vm("s1"); a("s_barrier"); issue_stage(a, "s4"); tev(a, "B1")
    for i in range(20): a(f"v_sub_f32 v{18+i}, v{18+i}, v38")
    for i in range(10): a(f"v_cvt_pk_bf16_f32 v{8+i}, v{18+2*i}, v{19+2*i}")
    for i in range(10):
        a(f"v_lshlrev_b32 v{18+2*i}, 16, v{8+i}\nv_and_b32 v{19+2*i}, {sT[4]}, v{8+i}\nv_mul_f32 v{18+2*i}, v39, v{18+2*i}\nv_mul_f32 v{19+2*i}, v39, v{19+2*i}")
    for i in range(10): a(f"v_cvt_pk_bf16_f32 v{8+i}, v{18+2*i}, v{19+2*i}")
    a(f"""v_lshrrev_b32 v18, 5, v0
    s_lshl_b32 {sT[3]}, {sW}, 1
    v_add_u32 v18, {sT[3]}, v18
    v_mul_u32_u24 v18, {LNP}, v18
    v_and_b32 v19, 31, v0
    v_mul_u32_u24 v19, 40, v19
    v_add_u32 v18, v18, v19
    v_add_u32 v18, {LNS}, v18""")
    for i in range(5): a(f"ds_write_b64 v18, {q2(8+2*i)} offset:{8*i}")
    a(f"v_xor_b32 v40, 0x80008000, v40\nv_mul_f32 v41, v39, v39\nv_lshlrev_b32 v45, 3, v45\ns_mov_b32 {sT[3]}, {WS_STATS}")
    tev(a, "pro2"); a.wait_vm("s2", "lgkmcnt(0)"); a("s_barrier"); issue_stage(a, "s5"); tev(a, "B2")
    a(f"""v_bfe_u32 v18, v0, 2, 2
    v_mul_u32_u24 v18, {LNP}, v18
    v_lshrrev_b32 v19, 4, v0
    v_lshlrev_b32 v19, 5, v19
    v_and_b32 v20, 3, v0
    v_lshl_add_u32 v19, v20, 3, v19
    v_add_u32 v18, v18, v19
    s_lshl_b32 {sT[4]}, {sW}, 7
    s_add_u32 {sT[5]}, {sT[4]}, {LNS}
    v_add_u32 v18, {sT[5]}, v18
    s_cmp_lt_u32 {sW}, 2
    s_cselect_b32 {sT[5]}, 2, 1
    s_lshl_b32 {sT[5]}, {sT[5]}, 9
    v_add_u32 v19, {sT[5]}, v18
    ds_read_b64_tr_b16 v[8:9], v18
    ds_read_b64_tr_b16 v[10:11], v18 offset:{4*LNP}
    ds_read_b64_tr_b16 v[12:13], v18 offset:512
    ds_read_b64_tr_b16 v[14:15], v18 offset:{4*LNP+512}
    ds_read_b64_tr_b16 v[20:21], v19
    ds_read_b64_tr_b16 v[22:23], v19 offset:{4*LNP}
    s_mov_b32 exec_lo, 1
    s_mov_b32 exec_hi, 1""")
    a.vm(f"buffer_store_dwordx2 v[40:41], v45, {SRD_WS}, {sT[3]} offen sc1", "st")
    a(f"""s_mov_b64 exec, -1
    s_mul_i32 {sT[3]}, s2, 10240
    s_lshl_b32 {sT[4]}, {sW}, 10
    s_add_u32 {sT[3]}, {sT[3]}, {sT[4]}
    s_add_u32 {sT[3]}, {sT[3]}, {WS_XNT}
    s_lshl_b32 {sT[5]}, {sT[5]}, 3
    s_add_u32 {sT[5]}, {sT[5]}, {sT[3]}
    s_add_u32 {sT[4]}, {sT[3]}, 4096
    v_lshlrev_b32 v18, 4, v0
    s_waitcnt lgkmcnt(0)""")
    a.vm(f"buffer_store_dwordx4 v[8:11], v18, {SRD_WS}, {sT[3]} offen sc1", "st")
    a.vm(f"buffer_store_dwordx4 v[12:15], v18, {SRD_WS}, {sT[4]} offen sc1", "st")
    a.vm(f"buffer_store_dwordx4 v[20:23], v18, {SRD_WS}, {sT[5]} offen sc1", "st")
    param_round(a, 46, 0)
    tev(a, "pro3"); a.wait_vm("s3"); a("s_barrier"); issue_stage(a, "s6"); tev(a, "B3")
    param_round(a, 54, 1)
    a(f"""v_and_b32 v8, 15, v0
    v_lshrrev_b32 v9, 4, v0
    v_lshlrev_b32 v10, 3, v8
    v_cvt_f32_u32 {vHL}, v10
    v_lshrrev_b32 v11, 3, v8
    v_and_b32 v12, 7, v8
    v_lshl_add_u32 v13, v11, 7, v12
    v_cvt_f32_u32 {vH1}, v13
    v_lshlrev_b32 v13, 7, v12
    v_add_u32 v13, 1024, v13
    v_cvt_f32_u32 {vH3}, v13
    v_lshrrev_b32 v13, 2, v12
    v_lshlrev_b32 v13, 7, v13
    v_and_b32 v14, 3, v12
    v_lshl_add_u32 v13, v14, 1, v13
    v_add_u32 v13, 256, v13
    v_lshrrev_b32 v14, 1, v12
    v_lshlrev_b32 v14, 7, v14
    v_and_b32 v15, 1, v12
    v_lshl_add_u32 v14, v15, 2, v14
    v_add_u32 v14, 512, v14
    v_cmp_lt_u32 vcc, 7, v8
    v_cndmask_b32 v13, v13, v14, vcc
    v_cvt_f32_u32 {vH2}, v13
    s_mul_i32 {sT[3]}, {sW}, {KCP}
    s_add_u32 {sT[3]}, {sT[3]}, {PB}
    v_lshlrev_b32 v13, 6, v9
    v_add_u32 {vPA}, {sT[3]}, v13
    v_lshl_add_u32 {vPA3}, v11, 8, {vPA}
    v_lshlrev_b32 v13, 4, v0
    s_mul_i32 {sT[3]}, {sW}, {KCP}
    s_add_u32 {sT[3]}, {sT[3]}, {KC}
    v_add_u32 {vPW}, {sT[3]}, v13
    s_lshl_b32 {sT[3]}, {sW}, 10
    s_add_u32 {sT[3]}, {sT[3]}, {KC}
    v_add_u32 {vPR}, {sT[3]}, v13
    v_lshrrev_b32 v11, 1, v9
    v_and_b32 v12, 1, v9
    v_lshlrev_b32 v13, 9, v11
    v_lshl_add_u32 v13, v12, 4, v13
    v_lshl_add_u32 v16, v8, 5, v13
    v_lshlrev_b32 v13, 8, v12
    v_lshl_add_u32 v14, v8, 4, v13
    v_add_u32 v14, {4*256}, v14
    v_lshl_add_u32 v15, v8, 3, v13
    v_add_u32 v15, {4*384}, v15
    v_cmp_lt_u32 vcc, 31, v0
    v_cndmask_b32 v17, v14, v15, vcc
    v_add_u32 v14, 8, v14
    v_add_u32 v15, 128, v15
    v_cndmask_b32 v18, v14, v15, vcc
    v_lshl_add_u32 v19, v8, 2, v13
    v_add_u32 v19, {4*512}, v19
    v_mov_b32 v20, {4*641}
    v_cndmask_b32 v21, v19, v20, vcc
    v_mov_b32 v22, 64
    v_cndmask_b32 v22, v22, 0, vcc
    s_cmp_eq_u32 {sW}, 1
    s_cselect_b64 vcc, -1, 0
    v_cndmask_b32 v16, v16, v17, vcc
    v_mov_b32 v23, 4
    v_cndmask_b32 v24, 8, v18, vcc
    v_sub_u32 v25, v18, v17
    v_cndmask_b32 v24, 8, v25, vcc
    s_cmp_eq_u32 {sW}, 2
    s_cselect_b64 vcc, -1, 0
    v_cndmask_b32 v16, v16, v21, vcc
    v_cndmask_b32 v23, v23, v22, vcc
    v_lshlrev_b32 v25, 1, v22
    v_cndmask_b32 v24, v24, v25, vcc
    s_cmp_eq_u32 {sW}, 3
    s_cselect_b64 vcc, -1, 0
    v_mov_b32 v25, {4*640}
    v_cndmask_b32 v16, v16, v25, vcc
    v_add_u32 {vTA[0]}, {TB+16}, v16
    v_add_u32 {vTA[1]}, {vTA[0]}, v23
    v_add_u32 {vTA[2]}, {vTA[0]}, v24
    v_add_u32 {vTA[3]}, {vTA[2]}, v23""")
    tev(a, "pro4"); a.wait_vm("s4"); a("s_barrier"); issue_stage(a, "s7"); tev(a, "B4")
    a(f"""s_lshl_b32 {sT[3]}, {sW}, 6
    v_add_u32 v8, {sT[3]}, v0
    v_lshlrev_b32 {vEX}, 4, v8
    v_add_u32 {vEX}, {KC}, {vEX}
    v_lshlrev_b32 v8, 3, v8
    v_sub_u32 v8, 2047, v8
    s_mov_b32 {sT[3]}, 0x4280""")
    for n in range(11):
        a(f"""v_max_i32 v10, 0, v8
        v_cvt_f32_i32 v10, v10
        v_cvt_pk_bf16_f32 v10, v10, v10
        v_and_b32 v10, 0xffff, v10
        v_subrev_u32 v10, {sT[3]}, v10
        v_min_i32 v11, 128, v8
        v_max_i32 v10, v10, v11
        v_lshlrev_b32 v10, 2, v10
        v_add_u32 v{GI[n]}, {TB+16}, v10
        v_subrev_u32 v8, 1, v8""")
    a.wait_vm("s5"); a.wait_vm("st") if "st" in a.vq else None
    a("s_barrier")
    a(f"s_cmp_lg_u32 {sW}, 0\ns_cbranch_scc1 L_noflag")
    a(f"s_lshl_b32 {sT[3]}, s2, 2\ns_add_u32 {sT[3]}, {sT[3]}, {WS_FLAGA}\nv_mov_b32 v8, {sTAG}\nv_mov_b32 v9, 0\ns_mov_b64 exec, 1")
    a(f"buffer_store_dword v8, v9, {SRD_WS}, {sT[3]} offen sc0 sc1\ns_mov_b64 exec, -1")
    a.label("L_noflag")
    issue_stage(a, "s8")
    stamp(a, 2)
    tev(a, "B5")
    a(f"s_mov_b32 {sIT}, 0")
    a.label("L_chan")
    for r in kgen_reads(0, PSET[0]): a(r)
    def site(k, sync=None, own=False):
        if own:
            spin_lds(a, sync, f"s_lshl_b32 {sT[1]}, {sIT}, 2\ns_add_u32 {sT[1]}, {sT[1]}, 4"); tev(a, "spin"); return
        S = a.newlabel("nodut"); E = a.newlabel("dut")
        a(f"s_cmp_ge_u32 {sIT}, 2\ns_cbranch_scc1 {S}")
        duty(a, 12, True, lgkm=sync is not None, name=str(k))
        if sync is not None:
            a(f"s_branch {E}"); a.label(S); spin_lds(a, sync); a.label(E)
        else: a.label(S)
    for q in range(4):
        if not Opt.nokgen: kgen_unit(a, q)
        if q < 3: site(q)
    if not Opt.nofin: kgen_finish(a)
    site(3, sync=0)
    if not Opt.nofin:
        kgen_reduce(a)
        site(4, sync=2, own=True)
        kgen_expand(a)
    site(5)
    a(f"s_add_u32 {sIT}, {sIT}, 1\ns_cmp_lt_u32 {sIT}, 2\ns_cbranch_scc1 L_chan\ns_cmp_eq_u32 {sIT}, 3\ns_cbranch_scc1 L_conv")
    stamp(a, 3)
    a.vq = ["s16"] * 6 + ["s17"] * 6 + ["s18"] * 6
    a("v_lshlrev_b32 v12, 4, v0")
    a(f"s_mov_b32 {sT[3]}, {WS_FLAGA}")
    poll = f"buffer_load_dwordx4 v[8:11], v12, {SRD_WS}, {sT[3]} offen sc0 sc1"
    chk = "\n".join(f"v_xor_b32 v{8+i}, {sTAG}, v{8+i}" for i in range(4)) + "\nv_or3_b32 v8, v8, v9, v10\nv_or_b32 v8, v8, v11\nv_cmp_ne_u32 vcc, 0, v8"
    a.vm(poll, "poll")
    a.wait_vm("s16"); a("s_barrier"); issue_stage(a, "s19")
    a.wait_vm("poll"); a(chk); a("s_cbranch_vccz L_aok")
    keep = list(a.vq)
    spin_flags(a, poll, chk, "polla")
    a.vq = keep
    a.label("L_aok")
    tev(a, "polled")
    a("s_barrier")
    a(f"s_cmp_lg_u32 s2, 0\ns_cbranch_scc1 L_noep\ns_cmp_lg_u32 {sW}, 0\ns_cbranch_scc1 L_noep")
    a(f"s_mov_b32 {sT[3]}, {WS_EPOCH}\nv_mov_b32 v8, {sTAG}\nv_mov_b32 v9, 0\ns_mov_b64 exec, 1")
    a(f"buffer_store_dword v8, v9, {SRD_WS}, {sT[3]} offen sc0 sc1\ns_mov_b64 exec, -1")
    a.label("L_noep")
    a(f"""v_mov_b32 v20, 0
    v_mov_b32 v21, 0
    v_mov_b32 v22, 0
    v_mov_b32 v23, 0
    v_and_b32 v24, 31, v0
    v_lshlrev_b32 v24, 4, v24
    s_min_u32 {sT[3]}, {sW}, 2
    s_mul_i32 {sT[3]}, {sT[3]}, {XSS}
    s_add_u32 {sT[3]}, {sT[3]}, {XS}
    v_add_u32 v24, {sT[3]}, v24
    ds_write_b128 v24, v[20:23]
    s_lshl_b32 {sT[3]}, {sW}, 6
    v_add_u32 v8, {sT[3]}, v0
    v_mul_u32_u24 v8, 10240, v8
    s_lshl_b32 {sT[4]}, {sW}, 10
    s_add_u32 {sT[4]}, {sT[4]}, {XS+512}""")
    for j in range(3):
        a(f"""s_add_u32 {sT[3]}, {sCH0}, {j}
        s_min_u32 {sT[3]}, {sT[3]}, 639
        s_lshl_b32 {sT[3]}, {sT[3]}, 4
        s_add_u32 {sT[3]}, {sT[3]}, {WS_XNT}
        s_add_u32 m0, {sT[4]}, {j*XSS}""")
        a.vm(f"buffer_load_dwordx4 v8, {SRD_WS}, {sT[3]} offen sc1 lds", "xs")
    a("s_waitcnt vmcnt(9)\ns_barrier")
    a("s_waitcnt vmcnt(3)\ns_barrier")
    a("s_barrier")
    stamp(a, 4)
    tev(a, "B20")
    a(f"s_cmp_eq_u32 {sNCH}, 3\ns_cbranch_scc1 L_chan")
    a.label("L_conv")
    a("s_waitcnt vmcnt(0)")
    spin_lds(a, 1)
    stamp(a, 5)
    tev(a, "convstart")
    a(f"s_cmp_ge_u32 {sW}, {sNCH}\ns_cbranch_scc1 L_hdone")
    AS = [64, 96]; BS = [128, 160]; Y0 = 192
    a(f"""v_and_b32 v10, 15, v0
    v_lshrrev_b32 v11, 4, v0
    v_and_b32 v12, 3, v10
    v_sub_u32 v13, v10, v12
    v_lshlrev_b32 v14, 3, v11
    v_sub_u32 v13, v14, v13
    v_add_u32 v13, 236, v13
    v_lshlrev_b32 v13, 1, v13
    v_mul_u32_u24 v12, {KCP}, v12
    s_mul_i32 {sT[3]}, {sW}, {KCS}
    s_add_u32 {sT[3]}, {sT[3]}, {KC}
    v_add3_u32 v8, v12, v13, {sT[3]}
    v_lshlrev_b32 v12, 5, v10
    v_lshl_add_u32 v12, v11, 4, v12
    s_mul_i32 {sT[3]}, {sW}, {XSS}
    s_add_u32 {sT[3]}, {sT[3]}, {XS+480}
    v_add_u32 v9, {sT[3]}, v12""")
    for r in range(32): a(f"v_mov_b32 v{Y0+r}, 0")
    lg = Lgkm(a)
    def creads(st):
        out = []
        for i in range(8):
            out.append(((st, "B", i), f"ds_read_b128 {q4(BS[st]+4*i)}, v9 offset:{512*i}"))
            out.append(((st, "A", i), f"ds_read_b64 {q2(AS[st]+4*i)}, v8 offset:{512*(7-i)}"))
            out.append(((st, "A", i), f"ds_read_b64 {q2(AS[st]+4*i+2)}, v8 offset:{512*(7-i)+8}"))
        return out
    pairs = sorted([(p, q) for p in range(8) for q in range(8) if p + q <= 7], key=lambda t: (max(t), t))
    for t, txt in creads(0):
        lg.op(txt, t)
        if len(lg.q) == 12: lg.wait(lg.q[3])
    lg.wait_all()
    a(f"v_subrev_u32 v8, 64, v8\nv_subrev_u32 v9, 64, v9\ns_mov_b32 {sIT}, 4")
    a(".p2align 6"); a.label("L_cv")
    for st in range(2):
        rd = creads(1 - st)
        for n, (p, q) in enumerate(pairs):
            a(f"v_mfma_f32_16x16x32_bf16 {q4(Y0+4*(p+q))}, {q4(AS[st]+4*p)}, {q4(BS[st]+4*q)}, {q4(Y0+4*(p+q))}")
            if rd:
                if len(lg.q) >= 12: lg.wait(lg.q[3])
                t, txt = rd.pop(0); lg.op(txt, t)
        lg.wait_all()
        a("v_subrev_u32 v8, 64, v8\nv_subrev_u32 v9, 64, v9")
    a(f"s_sub_u32 {sIT}, {sIT}, 1\ns_cmp_lg_u32 {sIT}, 0\ns_cbranch_scc1 L_cv")
    stamp(a, 6)
    tev(a, "convdone")
    a(f"""s_add_u32 {sT[3]}, {sCH0}, {sW}
    s_lshl_b32 {sT[4]}, {sT[3]}, 12
    s_add_u32 {sT[4]}, {sT[4]}, {WS_Y}
    v_bfe_u32 v12, v0, 4, 1
    v_lshlrev_b32 v12, 9, v12
    v_lshl_add_u32 v12, v10, 5, v12
    v_lshrrev_b32 v13, 5, v0
    v_lshl_add_u32 v12, v13, 4, v12""")
    for u in range(4):
        o = 224 + 4 * u; b = Y0 + 8 * u
        for i in range(4): a(f"v_cvt_pk_bf16_f32 v{o+i}, v{b+2*i}, v{b+2*i+1}")
        a(f"v_permlane16_swap_b32 v{o}, v{o+2}\nv_permlane16_swap_b32 v{o+1}, v{o+3}")
        a(f"buffer_store_dwordx4 {q4(o)}, v12, {SRD_WS}, {sT[4]} offen offset:{1024*u} sc1")
    a(f"""s_lshl_b32 {sT[3]}, {sT[3]}, 2
    s_add_u32 {sT[3]}, {sT[3]}, {WS_FLAGC}
    v_mov_b32 v8, {sTAG}
    v_mov_b32 v9, 0
    s_waitcnt vmcnt(0)
    s_mov_b64 exec, 1
    buffer_store_dword v8, v9, {SRD_WS}, {sT[3]} offen sc0 sc1
    s_mov_b64 exec, -1""")
    stamp(a, 7)
    tev(a, "flagC")
    a.label("L_hdone")
    if Opt.debug:
        dump_stamps(a, 8); a("s_waitcnt vmcnt(0)")
    a("s_endpgm")

def build():
    a = Asm()
    common(a)
    gemm_waves(a)
    helper_waves(a)
    a.label("L_exit"); a("s_endpgm")
    lines, nops = pad_hazards(a.lines)
    head = f"""; Fused LayerNorm + S4 convolution + ReGLU MLP for gfx950: one launch, 256 workgroups of 8 waves.
; Waves 0-3 run the two GEMMs, waves 4-7 stage operands, normalise, build the SSM kernel and convolve.
; @launch grid=(256,1,1) block=(512,1,1) lds={LDS_SIZE}
.amdgcn_target "amdgcn-amd-amdhsa--gfx950"
.text
.globl {NAME}_kernel
.p2align 8
.type {NAME}_kernel,@function
{NAME}_kernel:
"""
    tail = f"""
.section .rodata,"a"
.p2align 6
.amdhsa_kernel {NAME}_kernel
  .amdhsa_next_free_vgpr 256
  .amdhsa_next_free_sgpr 102
  .amdhsa_accum_offset 256
  .amdhsa_group_segment_fixed_size 0
  .amdhsa_kernarg_size 128
  .amdhsa_user_sgpr_count 2
  .amdhsa_user_sgpr_kernarg_segment_ptr 1
  .amdhsa_system_sgpr_workgroup_id_x 1
  .amdhsa_float_denorm_mode_32 3
.end_amdhsa_kernel
"""
    body = "\n".join(l if l.endswith(":") or l.startswith(".") else "    " + l for l in lines)
    return head + body + tail, nops

if __name__ == "__main__":
    out = sys.argv[1]
    for o in sys.argv[2:]: setattr(Opt, o, True)
    src, nops = build()
    open(out, "w").write(src)
    if Opt.prof:
        import json; json.dump(EVN, open(out + ".ev.json", "w"))
    print("written", out, "lines", src.count("\n"), "nop states", nops)
```

```python
import sys
from asm import Asm, pad_hazards

NAME = "parallel_sum__ssm_conv_s4__glu_gated_reglu__prompt"

WS_EPOCH = 0
WS_FLAGA = 4096
WS_FLAGB = 8192
WS_FLAGC = 12288
WS_STATS = 16384
WS_XNT = 32768
WS_Y = WS_XNT + 256 * 10240
WS_H = WS_Y + 640 * 4096
WS_END = WS_H + 128 * 57344
WS_DBG = WS_END
WS_DBG_END = WS_DBG + (4 << 20)

WSLOT = 14592; UOFF = 7296
XR = 4 * WSLOT; XSLOT = 8192
XS = XR + 4 * XSLOT; XSS = 4608
KC = XS + 3 * XSS; KCS = 16640; KCP = 4160
TB = KC + 3 * KCS; TBS = 2592
CNT = TB + 3 * TBS
LDS_SIZE = 163840
assert CNT + 64 <= TB + 8192 <= LDS_SIZE
LNS = XS; LNP = 1344
PB = KC + 2 * KCS
G2R = 20480

def P(i): return f"s[{8+2*i}:{9+2*i}]"
def Plo(i): return f"s{8+2*i}"
def Phi(i): return f"s{9+2*i}"
SRD_WS, SRD_X, SRD_W, SRD_O = "s[40:43]", "s[44:47]", "s[48:51]", "s[52:55]"
sWAVE, sW, sRB, sTB, sDB, sT0, sCQ, sGRP, sNCH, sCH0, sTAG = [f"s{i}" for i in range(56, 67)]
sT = [f"s{i}" for i in range(67, 76)]
sSPIN = "s76"
STAMP0 = 80
SPIN_MAX = 1 << 18
LOG2E = 0x3fb8aa3b; INV2PI = 0x3e22f983; ONES = 0x3f803f80

class Opt:
    debug = False
    dump = False
    prof = False
    nokgen = False
    nofin = False
    nodot = False
    nodma = False
    clk = False
    hdbg = False

def srd(a, name, ptr, nbytes):
    b = int(name[2:name.index(":")])
    a(f"s_mov_b32 s{b}, {Plo(ptr)}\ns_and_b32 s{b+1}, {Phi(ptr)}, 0xffff\ns_mov_b32 s{b+2}, {nbytes}\ns_mov_b32 s{b+3}, 0x20000")

EVN = {"g": [], "h": []}
class Ev:
    role = "g"; reg = "v255"; inloop = 1
def tev(a, name):
    if not Opt.prof: return
    if name not in EVN[Ev.role]: EVN[Ev.role].append(name)
    k = EVN[Ev.role].index(name)
    a(f"s_memtime s[96:97]\ns_waitcnt lgkmcnt(0)\ns_lshl_b32 s96, s96, 6\ns_or_b32 s96, s96, {k}\ns_mov_b32 m0, s98\nv_writelane_b32 {Ev.reg}, s96, m0\ns_add_u32 s98, s98, 1")
def tev_init(a, role, reg):
    Ev.role = role; Ev.reg = reg
    if not Opt.prof: return
    a(f"v_mov_b32 {reg}, 0\ns_mov_b32 s98, 0\ns_memrealtime s[94:95]\ns_memtime s[96:97]\ns_waitcnt lgkmcnt(0)\nv_writelane_b32 {reg}, s94, 62\nv_writelane_b32 {reg}, s96, 63")
def tev_dump(a):
    if not Opt.prof: return
    a(f"""s_lshl_b32 {sT[0]}, s2, 3
    s_add_u32 {sT[0]}, {sT[0]}, {sWAVE}
    s_lshl_b32 {sT[0]}, {sT[0]}, 8
    s_add_u32 {sT[0]}, {sT[0]}, {WS_DBG + (1 << 20)}
    v_lshlrev_b32 v1, 2, v0
    buffer_store_dword {Ev.reg}, v1, {SRD_WS}, {sT[0]} offen
    s_waitcnt vmcnt(0)""")

def stamp(a, k):
    if Opt.debug and not Opt.prof:
        a(f"s_memrealtime s[{STAMP0+2*k}:{STAMP0+2*k+1}]")
        if Opt.clk: a(f"s_memtime s[100:101]\ns_waitcnt lgkmcnt(0)\ns_mov_b32 s{STAMP0+2*k+1}, s100")

def dump_stamps(a, n):
    if Opt.prof: tev_dump(a); return
    if not Opt.debug: return
    a("s_waitcnt lgkmcnt(0)")
    if Opt.hdbg:
        a("v_mov_b32 v250, 0\ns_mov_b64 exec, 1")
        if n == 10:
            for k in range(n):
                a(f"v_mov_b32 v251, s{STAMP0+2*k}\nglobal_atomic_umax v250, v251, {P(14)} offset:{4*k}")
            a(f"s_not_b32 {sT[0]}, s{STAMP0}\nv_mov_b32 v251, {sT[0]}\nglobal_atomic_umax v250, v251, {P(14)} offset:60")
        else:
            for k in (2, 3, 5):
                a(f"v_mov_b32 v251, s{STAMP0+2*k}\nglobal_atomic_umax v250, v251, {P(14)} offset:{40+4*(2,3,5).index(k)}")
        a("s_mov_b64 exec, -1")
        return
    a(f"s_lshl_b32 {sT[0]}, s2, 3\ns_add_u32 {sT[0]}, {sT[0]}, {sWAVE}\ns_lshl_b32 {sT[0]}, {sT[0]}, 7\ns_add_u32 {sT[0]}, {sT[0]}, {WS_DBG}")
    a("v_mov_b32 v250, 0\ns_mov_b64 exec, 1")
    for k in range(n):
        a(f"v_mov_b32 v251, s{STAMP0+2*k}\nbuffer_store_dword v251, v250, {SRD_WS}, {sT[0]} offen offset:{4*k}")
        if Opt.clk: a(f"v_mov_b32 v251, s{STAMP0+2*k+1}\nbuffer_store_dword v251, v250, {SRD_WS}, {sT[0]} offen offset:{64+4*k}")
    a("s_mov_b64 exec, -1")

def spin_flags(a, load, check, name):
    L = a.newlabel(name); E = a.newlabel(name + "_ok")
    a(f"s_mov_b32 {sSPIN}, {SPIN_MAX}")
    a.label(L)
    a(load); a("s_waitcnt vmcnt(0)"); a.vq = []
    a(check)
    a(f"s_cbranch_vccz {E}\ns_sub_u32 {sSPIN}, {sSPIN}, 1\ns_cmp_lg_u32 {sSPIN}, 0\ns_cbranch_scc1 {L}")
    a.label(E)

def common(a):
    a("s_cmp_ge_u32 s2, 256\ns_cbranch_scc1 L_exit")
    a("s_load_dwordx16 s[8:23], s[0:1], 0\ns_load_dwordx16 s[24:39], s[0:1], 64")
    stamp(a, 0)
    a(f"v_lshrrev_b32 v1, 6, v0\nv_and_b32 v0, 63, v0\nv_readfirstlane_b32 {sWAVE}, v1")
    x, i = sT[0], sT[1]
    a(f"""s_and_b32 {x}, s2, 7
    s_lshr_b32 {i}, s2, 3
    s_and_b32 {sRB}, {x}, 1
    s_lshl_b32 {sRB}, {sRB}, 3
    s_and_b32 {sT[2]}, {i}, 7
    s_add_u32 {sRB}, {sRB}, {sT[2]}
    s_lshr_b32 {sCQ}, {i}, 3
    s_lshr_b32 {sGRP}, {x}, 1
    s_mul_i32 {sT0}, {sGRP}, 27
    s_mul_i32 {sT[3]}, {sCQ}, 7
    s_add_u32 {sT0}, {sT0}, {sT[3]}
    s_lshr_b32 {sNCH}, {sCQ}, 1
    s_add_u32 {sNCH}, {sNCH}, 2
    s_mul_i32 {sCH0}, {x}, 80
    s_mul_i32 {sT[2]}, {sT[2]}, 10
    s_add_u32 {sCH0}, {sCH0}, {sT[2]}
    s_lshl_b32 {sT[3]}, {sCQ}, 1
    s_cmp_eq_u32 {sCQ}, 3
    s_cselect_b32 {sT[3]}, 7, {sT[3]}
    s_add_u32 {sCH0}, {sCH0}, {sT[3]}
    s_lshl_b32 {sTB}, {x}, 2
    s_and_b32 {sT[3]}, {i}, 3
    s_add_u32 {sTB}, {sTB}, {sT[3]}
    s_lshr_b32 {sDB}, {i}, 2
    s_and_b32 {sW}, {sWAVE}, 3
    s_cmp_ge_u32 {sWAVE}, 4
    s_cbranch_scc1 L_helper""")

def wait_kernarg(a):
    a("s_waitcnt lgkmcnt(0)")
    a(f"s_load_dword {sTAG}, {P(15)}, {WS_EPOCH}")
    srd(a, SRD_WS, 15, WS_DBG_END if (Opt.debug or Opt.dump) else WS_END)
    srd(a, SRD_X, 0, 2048 * 1280)

def finish_tag(a):
    a(f"s_waitcnt lgkmcnt(0)\ns_mul_i32 {sTAG}, {sTAG}, 1664525\ns_add_u32 {sTAG}, {sTAG}, 1013904223")

class Lgkm:
    def __init__(self, a): self.a = a; self.q = []
    def op(self, text, tag): self.a(text); self.q.append(tag)
    def wait(self, *tags):
        idx = [i for i, t in enumerate(self.q) if t in tags]
        if not idx: return
        n = min(len(self.q) - 1 - max(idx), 15)
        self.a(f"s_waitcnt lgkmcnt({n})"); self.q = self.q[len(self.q) - n:] if n else []
    def wait_all(self):
        self.a("s_waitcnt lgkmcnt(0)"); self.q = []

vWa, vWb, vSa, vSb, vX0a, vX1a, vX0b, vX1b, vM0, vM1, vHS = [f"v{i}" for i in range(1, 12)]
CS = 12
SET = {"a": dict(W=[16, 20, 24, 28], X=[32, 36]), "b": dict(W=[40, 44, 48, 52], X=[56, 60])}
ADDR = {"a": dict(W=vWa, S=vSa, X=[vX0a, vX1a]), "b": dict(W=vWb, S=vSb, X=[vX0b, vX1b])}
ACC = [64 + 16 * i for i in range(7)]
TILE = [(0, 0), (0, 1), (1, 0), (1, 1), (2, 0), (2, 1), (3, 0)]
def q4(r): return f"v[{r}:{r+3}]"
def q2(r): return f"v[{r}:{r+1}]"

def g1_reads(half, slot):
    s, ad = SET[half], ADDR[half]
    def wr(k):
        reg = ad["S"] if k == 3 else ad["W"]
        off = slot * WSLOT + (0 if k == 3 else 32 * k)
        return [((half, "W", k), f"ds_read_b64_tr_b16 {q2(s['W'][k])}, {reg} offset:{off}"),
                ((half, "W", k), f"ds_read_b64_tr_b16 {q2(s['W'][k]+2)}, {reg} offset:{off+896}")]
    def xr(k): return [((half, "X", k), f"ds_read_b128 {q4(s['X'][k])}, {ad['X'][k]} offset:{slot*XSLOT}")]
    return xr(0) + wr(0) + xr(1) + wr(1) + wr(2) + wr(3)

def g1_half(a, lg, half, reads, barrier, colsum, extra=()):
    s = SET[half]
    reads = list(reads); extra = list(extra)
    dots = []
    if barrier: lg.wait_all()
    for m, (w, x) in enumerate(TILE):
        lg.wait((half, "W", w), (half, "X", x))
        a(f"v_mfma_f32_32x32x16_bf16 v[{ACC[m]}:{ACC[m]+15}], {q4(s['W'][w])}, {q4(s['X'][x])}, v[{ACC[m]}:{ACC[m]+15}]")
        if colsum and x == 0 and not Opt.nodot:
            dots += [f"v_dot2c_f32_bf16 v{CS+w}, {sT[8]}, v{s['W'][w]+d}" for d in range(4)]
        if barrier and m == 0:
            tev(a, "pre-bar")
            a("s_barrier")
            tev(a, "post-bar")
            if callable(barrier): barrier()
            continue
        for _ in range(2):
            if reads:
                t, txt = reads.pop(0); lg.op(txt, t)
        nd = 4 if m == 6 else (2 if m < 5 else 3)
        for _ in range(nd):
            if dots: a(dots.pop(0))
        if extra and m >= 2: a(extra.pop(0))
    for d in dots: a(d)
    for t, txt in reads: lg.op(txt, t)
    for e in extra: a(e)

def gemm_waves(a):
    th, fg = sT[0], sT[1]
    a(f"s_and_b32 {th}, {sW}, 1\ns_lshr_b32 {fg}, {sW}, 1")
    a(f"""v_and_b32 v16, 15, v0
    v_lshrrev_b32 v16, 2, v16
    v_lshrrev_b32 v17, 5, v0
    v_lshl_add_u32 v16, v17, 3, v16
    v_mul_u32_u24 v16, 224, v16
    v_bfe_u32 v18, v0, 4, 1
    v_mul_u32_u24 v18, {UOFF}, v18
    v_and_b32 v19, 3, v0
    v_lshlrev_b32 v19, 3, v19
    v_add3_u32 v16, v16, v18, v19
    s_mul_i32 {sT[2]}, {th}, 3584
    s_sub_u32 {sT[3]}, 3584, {sT[2]}
    s_mul_i32 {sT[4]}, {fg}, 96
    s_add_u32 {sT[5]}, {sT[2]}, {sT[4]}
    v_add_u32 {vWa}, {sT[5]}, v16
    s_add_u32 {sT[5]}, {sT[3]}, {sT[4]}
    v_add_u32 {vWb}, {sT[5]}, v16
    s_add_u32 {sT[5]}, {sT[2]}, 192
    v_add_u32 {vSa}, {sT[5]}, v16
    s_add_u32 {sT[5]}, {sT[3]}, 192
    v_add_u32 {vSb}, {sT[5]}, v16
    v_and_b32 v18, 31, v0
    v_lshlrev_b32 v19, 6, v18
    v_bfe_u32 v20, v0, 2, 2
    s_lshl_b32 {sT[2]}, {th}, 1
    v_add_u32 v21, {sT[2]}, v17
    v_xor_b32 v22, v21, v20
    v_xor_b32 v23, 2, v22
    v_lshl_add_u32 v22, v22, 4, v19
    v_lshl_add_u32 v23, v23, 4, v19
    s_lshl_b32 {sT[2]}, {th}, 12
    s_add_u32 {sT[2]}, {sT[2]}, {XR}
    s_lshl_b32 {sT[3]}, {fg}, 11
    s_add_u32 {sT[4]}, {sT[2]}, {sT[3]}
    s_sub_u32 {sT[5]}, {sT[2]}, {sT[3]}
    s_add_u32 {sT[5]}, {sT[5]}, 2048
    v_add_u32 {vX0a}, {sT[4]}, v22
    v_add_u32 {vX1a}, {sT[5]}, v22
    v_add_u32 {vX0b}, {sT[4]}, v23
    v_add_u32 {vX1b}, {sT[5]}, v23
    v_bfe_u32 v20, v0, 4, 1
    v_mul_u32_u24 v20, 57344, v20
    v_and_b32 v21, 15, v0
    v_lshl_add_u32 v21, v17, 4, v21
    v_lshl_add_u32 {vHS}, v21, 4, v20""")
    for r in list(range(CS, CS + 4)) + list(range(64, 256)): a(f"v_mov_b32 v{r}, 0")
    wait_kernarg(a)
    srd(a, SRD_W, 12, 1728 * 1280)
    srd(a, SRD_O, 13, 2048 * 1280)
    finish_tag(a)
    a(f"s_mov_b32 {sT[8]}, {ONES}")
    lg = Lgkm(a)
    a("s_barrier")
    stamp(a, 1)
    tev_init(a, "g", "v255")
    for t, txt in g1_reads("a", 0): lg.op(txt, t)
    a(f"s_mov_b32 {sT[7]}, 4")
    a(".p2align 6"); a.label("L_g1")
    entry = list(lg.q)
    for st in range(4):
        g1_half(a, lg, "a", g1_reads("b", st), None, True)
        g1_half(a, lg, "b", g1_reads("a", (st + 1) & 3), True, False)
    assert lg.q == entry
    a(f"s_sub_u32 {sT[7]}, {sT[7]}, 1\ns_cmp_lg_u32 {sT[7]}, 0\ns_cbranch_scc1 L_g1")
    def load_means():
        a(f"""s_lshl_b32 {sT[2]}, {sRB}, 7
        s_lshl_b32 {sT[3]}, {th}, 6
        s_add_u32 {sT[2]}, {sT[2]}, {sT[3]}
        s_lshl_b32 {sT[3]}, {fg}, 5
        s_add_u32 {sT[4]}, {sT[2]}, {sT[3]}
        s_sub_u32 {sT[5]}, {sT[2]}, {sT[3]}
        s_add_u32 {sT[5]}, {sT[5]}, 32
        s_lshl_b32 {sT[4]}, {sT[4]}, 3
        s_lshl_b32 {sT[5]}, {sT[5]}, 3
        s_add_u32 {sT[4]}, {sT[4]}, {WS_STATS}
        s_add_u32 {sT[5]}, {sT[5]}, {WS_STATS}
        v_and_b32 {vM1}, 31, v0
        v_lshlrev_b32 {vM1}, 3, {vM1}""")
        a.vm(f"buffer_load_dword {vM0}, {vM1}, {SRD_WS}, {sT[4]} offen sc1", "m")
        a.vm(f"buffer_load_dword {vM1}, {vM1}, {SRD_WS}, {sT[5]} offen sc1", "m")
    for st in range(16, 19):
        g1_half(a, lg, "a", g1_reads("b", st & 3), None, True)
        g1_half(a, lg, "b", g1_reads("a", (st + 1) & 3), load_means if st == 17 else True, False)
    g1_half(a, lg, "a", g1_reads("b", 3), None, True)
    a(f"s_xor_b32 {sT[2]}, {sW}, 1\ns_mul_i32 {sT[2]}, {sT[2]}, {G2R}\nv_lshlrev_b32 v17, 4, v0\nv_add_u32 v16, {sT[2]}, v17")
    lg.op(f"ds_write_b128 v16, {q4(CS)}", "cs")
    a(f"s_mul_i32 {sT[2]}, {sW}, {G2R}\nv_add_u32 v16, {sT[2]}, v17")
    def part():
        lg.op(f"ds_read_b128 {q4(20)}, v16", "cs2")
    zero = [f"v_mov_b32 v{r}, 0" for r in (17, 18, 19, 25, 26, 27, 29, 30, 31, 33, 34, 35, 37, 38, 39)]
    g1_half(a, lg, "b", [], part, False, extra=[])
    stamp(a, 2)
    lg.wait("cs2")
    for k in range(4): a(f"v_add_f32 v{CS+k}, v{CS+k}, v{20+k}")
    for z in zero: a(z)
    a("v_mov_b32 v21, 0\nv_mov_b32 v22, 0\nv_mov_b32 v23, 0")
    for k in range(4):
        d = SET["a"]["W"][k]
        a(f"""v_cvt_pk_bf16_f32 v40, v{CS+k}, v{CS+k}
        v_lshlrev_b32 v40, 16, v40
        v_sub_f32 v40, v{CS+k}, v40
        v_cvt_pk_bf16_f32 v{d}, v{CS+k}, v40""")
    a.wait_vm("m")
    a(f"v_mov_b32 v32, {vM0}\nv_mov_b32 v36, {vM1}")
    for m, (w, x) in enumerate(TILE):
        a(f"v_mfma_f32_32x32x16_bf16 v[{ACC[m]}:{ACC[m]+15}], {q4(SET['a']['W'][w])}, {q4(SET['a']['X'][x])}, v[{ACC[m]}:{ACC[m]+15}]")
    sH0, sH1, sHS = sT[2], sT[3], sT[4]
    a(f"""s_lshl_b32 {sT[5]}, {sRB}, 3
    s_lshl_b32 {sT[6]}, {th}, 2
    s_add_u32 {sT[5]}, {sT[5]}, {sT[6]}
    s_mul_i32 {sT[5]}, {sT[5]}, 57344
    s_mul_i32 {sT[6]}, {sGRP}, 14336
    s_add_u32 {sT[5]}, {sT[5]}, {sT[6]}
    s_mul_i32 {sT[6]}, {sCQ}, 3584
    s_add_u32 {sT[5]}, {sT[5]}, {sT[6]}
    s_add_u32 {sT[5]}, {sT[5]}, {WS_H}
    s_mul_i32 {sT[6]}, {fg}, 114688
    s_add_u32 {sHS}, {sT[5]}, {sT[6]}
    s_sub_u32 {sH1}, {sT[5]}, {sT[6]}
    s_add_u32 {sH1}, {sH1}, 114688
    s_mul_i32 {sT[6]}, {fg}, 1536
    s_add_u32 {sH0}, {sHS}, {sT[6]}
    s_add_u32 {sH1}, {sH1}, {sT[6]}
    s_add_u32 {sHS}, {sHS}, 3072
    s_cmp_eq_u32 {sCQ}, 3
    s_cselect_b32 {sHS}, 0x40000000, {sHS}""")
    for m, (w, x) in enumerate(TILE):
        b = ACC[m]; o = 40 + 4 * (m & 1)
        for r in range(8): a(f"v_max_f32 v{b+r}, 0, v{b+r}")
        for r in range(8): a(f"v_mul_f32 v{b+r}, v{b+r}, v{b+8+r}")
        for r in range(4): a(f"v_cvt_pk_bf16_f32 v{o+r}, v{b+2*r}, v{b+2*r+1}")
        so = sHS if w == 3 else (sH0, sH1)[x]
        a.vm(f"buffer_store_dwordx4 {q4(o)}, {vHS}, {SRD_WS}, {so} offen offset:{0 if w == 3 else 512*w} sc1", "h")
    sFB = sT[2]
    a(f"""s_lshl_b32 {sT[5]}, {sRB}, 1
    s_add_u32 {sT[5]}, {sT[5]}, {th}
    s_lshl_b32 {sT[5]}, {sT[5]}, 4
    s_lshl_b32 {sT[6]}, {sGRP}, 2
    s_add_u32 {sT[5]}, {sT[5]}, {sT[6]}
    s_add_u32 {sT[5]}, {sT[5]}, {sCQ}
    s_lshl_b32 {sT[5]}, {sT[5]}, 1
    s_add_u32 {sT[5]}, {sT[5]}, {fg}
    s_lshl_b32 {sFB}, {sT[5]}, 2
    s_add_u32 {sFB}, {sFB}, {WS_FLAGB}""")
    stamp(a, 3)
    if Opt.prof:
        a("v_mov_b32 v174, v255\nv_mov_b32 v255, 0"); Ev.reg = "v174"
    tev(a, "epilogue")
    gemm2(a, lg, sFB)

def gemm2(a, lg, sFB):
    vD = [f"v{i}" for i in range(1, 6)]; vH = [f"v{i}" for i in range(6, 10)]; vR = "v10"
    WS_ = [64 + 20 * i for i in range(5)]; HS_ = [16 + 16 * i for i in range(3)]
    A2 = lambda s, j: 176 + 20 * s + 4 * j
    sM, sWo, sHo = sT[3], sT[4], sT[5]
    a(f"s_mul_i32 {sT[6]}, {sDB}, 160\ns_mov_b32 {sT[7]}, 6554")
    for q in range(5):
        a(f"""v_add_u32 v12, {64*q}, v0
        v_mul_u32_u24 v13, {sT[7]}, v12
        v_lshrrev_b32 v13, 16, v13
        v_mul_u32_u24 v14, 10, v13
        v_sub_u32 v14, v12, v14
        v_mul_u32_u24 v13, 1280, v13
        v_lshl_add_u32 v13, v14, 4, v13
        v_add_u32 {vD[q]}, {sT[6]}, v13""")
        if 0 < q < 4: a(f"v_subrev_u32 {vD[q]}, {1024*q}, {vD[q]}")
    a(f"s_mul_i32 {sM}, {sW}, {G2R}\ns_mul_i32 {sWo}, {sW}, {432*1280}")
    def dma(ks):
        slot = ks & 3
        a(f"s_add_u32 m0, {sM}, {slot*5120}")
        for q in range(4): a.vm(f"buffer_load_dwordx4 {vD[q]}, {SRD_W}, {sWo} offen offset:{1024*q} lds", ("W", ks))
        a(f"s_add_u32 m0, {sM}, {slot*5120+4096}")
        a.vm(f"buffer_load_dwordx4 {vD[4]}, {SRD_W}, {sWo} offen lds", ("W", ks))
        a(f"s_add_u32 {sWo}, {sWo}, {32*1280}")
    def wreads(ks):
        return [(("W", ks), f"ds_read_b64_tr_b16 {q2(WS_[ks % 5]+4*j+2*h)}, {vR} offset:{(ks & 3)*5120+32*j+1280*h}") for j in range(5) for h in range(2)]
    for ks in range(4): dma(ks)
    a(f"""v_lshrrev_b32 v12, 5, v0
    v_lshlrev_b32 v12, 4, v12
    v_bfe_u32 v13, v0, 4, 1
    v_lshl_add_u32 v12, v13, 2, v12
    v_bfe_u32 v13, v0, 2, 2
    v_add_u32 v12, v12, v13
    v_mul_u32_u24 v12, 160, v12
    v_and_b32 v13, 3, v0
    v_lshl_add_u32 v12, v13, 3, v12
    v_add_u32 {vR}, {sM}, v12
    v_lshlrev_b32 v12, 4, v0""")
    for s in range(4):
        a(f"""s_add_u32 {sT[6]}, {sW}, {s}
        s_and_b32 {sT[6]}, {sT[6]}, 3
        s_lshl_b32 {sT[7]}, {sTB}, 2
        s_add_u32 {sT[6]}, {sT[6]}, {sT[7]}
        s_mul_i32 {sT[6]}, {sT[6]}, 57344
        v_add_u32 {vH[s]}, {sT[6]}, v12""")
    a.wait_vm("h")
    a(f"v_mov_b32 v12, {sTAG}\nv_mov_b32 v13, 0\ns_mov_b64 exec, 1")
    a.vm(f"buffer_store_dword v12, v13, {SRD_WS}, {sFB} offen sc0 sc1", "flag")
    a("s_mov_b64 exec, -1")
    stamp(a, 4)
    tev(a, "flagB")
    for ks in range(5):
        a.wait_vm(("W", ks))
        for t, txt in wreads(ks): lg.op(txt, t)
        lg.wait_all()
        dma(ks + 4)
    a(f"""s_lshl_b32 {sT[6]}, {sTB}, 4
    s_lshl_b32 {sT[7]}, {sW}, 2
    s_add_u32 {sT[6]}, {sT[6]}, {sT[7]}
    s_lshl_b32 {sT[6]}, {sT[6]}, 3
    s_add_u32 {sT[6]}, {sT[6]}, {WS_FLAGB}
    v_and_b32 v13, 7, v0
    v_lshlrev_b32 v13, 2, v13""")
    stamp(a, 5)
    tev(a, "Wpre")
    spin_flags(a, f"buffer_load_dword v12, v13, {SRD_WS}, {sT[6]} offen sc0 sc1", f"v_cmp_ne_u32 vcc, {sTAG}, v12", "pollb")
    stamp(a, 6)
    tev(a, "hseen")
    a(f"s_mul_i32 {sHo}, {sW}, 14336\ns_add_u32 {sHo}, {sHo}, {WS_H}")
    def hload(ks):
        if ks == 13:
            a("v_cmp_lt_u32 vcc, 31, v0\nv_mov_b32 v12, 0x40000000")
            for s in range(4): a(f"v_cndmask_b32 {vH[s]}, {vH[s]}, v12, vcc")
        for s in range(4):
            a.vm(f"buffer_load_dwordx4 {q4(HS_[ks % 3]+4*s)}, {vH[s]}, {SRD_WS}, {sHo} offen sc1", ("H", ks, s))
        a(f"s_add_u32 {sHo}, {sHo}, 1024")
    for ks in range(3): hload(ks)
    XV, YV, vR2 = WS_[4], WS_[4] + 10, "v164"
    for ks in range(14):
        side = []
        if 1 <= ks <= 9:
            kk = ks + 4
            side.append(("waitW", kk))
            side += wreads(kk)
        if 1 <= ks <= 5: side.append(("dma", ks + 8))
        for s in range(4):
            a.wait_vm(("H", ks, s))
            for j in range(5):
                if s == 0 and j == 0 and ks >= 5: lg.wait(("W", ks))
                a(f"v_mfma_f32_16x16x32_bf16 {q4(A2(s, j))}, {q4(WS_[ks % 5]+4*j)}, {q4(HS_[ks % 3]+4*s)}, {q4(A2(s, j))}")
                if side and side[0][0] != "dma":
                    e = side.pop(0)
                    if e[0] == "waitW":
                        if ("W", e[1]) in a.vq: a.wait_vm(("W", e[1]))
                    else: lg.op(e[1], e[0])
        if side:
            lg.wait_all(); dma(side.pop(0)[1])
        if ks + 3 <= 13: hload(ks + 3)
        if Opt.prof and ks in (0, 4, 9, 10):
            keep = list(lg.q); tev(a, f"ks{ks}"); lg.q = []
        if ks == 10:
            a(f"""s_mul_i32 {sT[6]}, {sDB}, 320
            s_add_u32 {sT[6]}, {sT[6]}, {WS_FLAGC}
            v_min_u32 v14, 39, v0
            v_lshlrev_b32 v14, 3, v14""")
            stamp(a, 7)
            spin_flags(a, f"buffer_load_dwordx2 v[12:13], v14, {SRD_WS}, {sT[6]} offen sc0 sc1",
                       f"v_xor_b32 v12, {sTAG}, v12\nv_xor_b32 v13, {sTAG}, v13\nv_or_b32 v12, v12, v13\nv_cmp_ne_u32 vcc, 0, v12", "pollc")
            a(f"""s_mul_i32 {sT[6]}, {sDB}, {80*4096}
            s_lshl_b32 {sT[7]}, {sTB}, 7
            s_add_u32 {sT[6]}, {sT[6]}, {sT[7]}
            s_lshl_b32 {sT[7]}, {sW}, 5
            s_add_u32 {sT[6]}, {sT[6]}, {sT[7]}
            s_add_u32 {sT[6]}, {sT[6]}, {WS_Y}
            v_lshrrev_b32 v12, 1, v0
            v_and_b32 v13, 1, v0
            v_lshlrev_b32 v13, 4, v13
            v_lshl_add_u32 v14, v12, 12, v13
            v_add_u32 v15, {32*4096-1024}, v14
            v_min_u32 v12, 15, v12
            v_lshl_add_u32 v12, v12, 12, v13
            v_add_u32 v12, {64*4096-2048}, v12
            s_mov_b32 m0, {sM}""")
            lg.wait(("W", 12))
            a.vm(f"buffer_load_dwordx4 v14, {SRD_WS}, {sT[6]} offen sc1 lds", "y")
            a.vm(f"buffer_load_dwordx4 v15, {SRD_WS}, {sT[6]} offen offset:1024 sc1 lds", "y")
            a.vm(f"buffer_load_dwordx4 v12, {SRD_WS}, {sT[6]} offen offset:2048 sc1 lds", "y")
            a(f"""s_lshl_b32 {sT[6]}, {sTB}, 6
            s_lshl_b32 {sT[7]}, {sW}, 4
            s_add_u32 {sT[6]}, {sT[6]}, {sT[7]}
            v_and_b32 v12, 15, v0
            v_add_u32 v12, {sT[6]}, v12
            v_lshlrev_b32 v13, 3, v12
            v_mul_u32_u24 v12, 1280, v12
            v_lshrrev_b32 v14, 4, v0
            v_lshl_add_u32 v12, v14, 3, v12
            s_mul_i32 {sT[6]}, {sDB}, 160
            v_add_u32 v165, {sT[6]}, v12
            s_mov_b32 {sT[7]}, {WS_STATS+4}""")
            a.vm(f"buffer_load_dword {vR2}, v13, {SRD_WS}, {sT[7]} offen sc1", "x")
            for j in range(5):
                a.vm(f"buffer_load_dwordx2 {q2(XV+2*j)}, v165, {SRD_X}, 0 offen offset:{32*j}", "x")
    stamp(a, 8)
    tev(a, "g2done")
    a(f"v_lshlrev_b32 v12, 4, v0\nv_add_u32 v13, {sM}, v12")
    for s in range(1, 4):
        for j in range(5): lg.op(f"ds_write_b128 v13, {q4(A2(s, j))} offset:{s*5120+1024*j}", "red")
    a.wait_vm("y")
    a(f"""v_bfe_u32 v14, v0, 2, 4
    v_lshlrev_b32 v14, 5, v14
    v_and_b32 v15, 3, v0
    v_lshl_add_u32 v14, v15, 3, v14
    v_add_u32 v14, {sM}, v14""")
    for j in range(5): lg.op(f"ds_read_b64_tr_b16 {q2(YV+2*j)}, v14 offset:{512*j}", "y")
    lg.wait_all()
    tev(a, "red-wr")
    a("s_barrier")
    tev(a, "red-bar")
    RB = [16, 36, 64]
    for s in range(1, 4):
        a(f"""s_sub_u32 {sT[6]}, {sW}, {s}
        s_and_b32 {sT[6]}, {sT[6]}, 3
        s_mul_i32 {sT[6]}, {sT[6]}, {G2R}
        v_add_u32 v13, {sT[6]}, v12""")
        for j in range(5): lg.op(f"ds_read_b128 {q4(RB[s-1]+4*j)}, v13 offset:{s*5120+1024*j}", ("r", s))
    for s in range(1, 4):
        lg.wait(("r", s))
        for r in range(20): a(f"v_add_f32 v{176+r}, v{176+r}, v{RB[s-1]+r}")
    a.wait_vm("x")
    a("s_mov_b32 %s, 0xffff0000" % sT[6])
    for j in range(5):
        o = 84 + 2 * j
        a(f"""v_lshlrev_b32 v16, 16, v{YV+2*j}
        v_and_b32 v17, {sT[6]}, v{YV+2*j}
        v_lshlrev_b32 v18, 16, v{YV+2*j+1}
        v_and_b32 v19, {sT[6]}, v{YV+2*j+1}
        v_lshlrev_b32 v20, 16, v{XV+2*j}
        v_and_b32 v21, {sT[6]}, v{XV+2*j}
        v_lshlrev_b32 v22, 16, v{XV+2*j+1}
        v_and_b32 v23, {sT[6]}, v{XV+2*j+1}""")
        for r in range(4): a(f"v_add_f32 v{16+r}, v{16+r}, v{20+r}")
        for r in range(4): a(f"v_fmac_f32 v{16+r}, {vR2}, v{176+4*j+r}")
        a(f"v_cvt_pk_bf16_f32 v{o}, v16, v17\nv_cvt_pk_bf16_f32 v{o+1}, v18, v19")
        a.vm(f"buffer_store_dwordx2 {q2(o)}, v165, {SRD_O}, 0 offen offset:{32*j}", "o")
    if Opt.debug:
        a.wait_vm_all(); stamp(a, 9); tev(a, 'end'); dump_stamps(a, 10)
    a("s_endpgm")

vDW = [f"v{i}" for i in range(1, 5)]; vDX = ["v5", "v6"]
sWm, sXm, sWo_, sXo, sSL, sIT = "s77", "s78", "s79", "s3", "s4", "s5"
sK = [sT[5], sT[6], "s0"]; sD = ["s1", sT[7], sT[8]]

def issue_stage(a, tagged):
    if Opt.nodma and tagged not in ("s0", "s1", "s2", "s3"):
        a.vq += [tagged] * 6
        return
    a(f"s_mov_b32 m0, {sWm}")
    for q in range(3): a.vm(f"buffer_load_dwordx4 {vDW[q]}, {SRD_W}, {sWo_} offen offset:{1024*q} lds", tagged)
    a("s_mov_b32 exec_hi, 0")
    a.vm(f"buffer_load_dwordx4 {vDW[3]}, {SRD_W}, {sWo_} offen offset:3072 lds", tagged)
    a(f"s_mov_b32 exec_hi, -1\ns_mov_b32 m0, {sXm}")
    for q in range(2): a.vm(f"buffer_load_dwordx4 {vDX[q]}, {SRD_X}, {sXo} offen offset:{1024*q} lds", tagged)
    a(f"""s_add_u32 {sWo_}, {sWo_}, {32*3456}
    s_add_u32 {sXo}, {sXo}, 64
    s_add_u32 {sSL}, {sSL}, 1
    s_and_b32 {sSL}, {sSL}, 3
    s_mul_i32 {sWm}, {sSL}, {WSLOT}
    s_add_u32 {sWm}, {sWm}, s6
    s_lshl_b32 {sXm}, {sSL}, 13
    s_add_u32 {sXm}, {sXm}, s7""")

def duty(a, n, issue=True, lgkm=False, name=""):
    tev(a, "chunk" + name)
    a(f"s_waitcnt vmcnt({n})" + (" lgkmcnt(0)" if lgkm else ""))
    tev(a, "vmw")
    a("s_barrier")
    tev(a, "bar")
    if issue: issue_stage(a, None)
    tev(a, "issue")

def spin_lds(a, k, target=None):
    L = a.newlabel("spin"); E = a.newlabel("spin_ok")
    a(f"""s_waitcnt lgkmcnt(0)
    v_mov_b32 v7, {CNT + 4*k}
    v_mov_b32 v154, 1
    s_mov_b64 exec, 1
    ds_add_u32 v7, v154
    s_mov_b64 exec, -1
    s_mov_b32 {sSPIN}, {SPIN_MAX}""")
    a(target or f"s_mov_b32 {sT[1]}, 4")
    a.label(L)
    a(f"""ds_read_b32 v154, v7
    s_waitcnt lgkmcnt(0)
    v_readfirstlane_b32 {sT[0]}, v154
    s_cmp_ge_u32 {sT[0]}, {sT[1]}
    s_cbranch_scc1 {E}
    s_sub_u32 {sSPIN}, {sSPIN}, 1
    s_cmp_lg_u32 {sSPIN}, 0
    s_cbranch_scc1 {L}""")
    a.label(E)

def row_sum32(a, v, t):
    for sh in (8, 4, 2, 1): a(f"v_add_f32_dpp {v}, {v}, {v} row_ror:{sh} row_mask:0xf bank_mask:0xf")
    a(f"v_mov_b32 {t}, {v}\nv_permlane16_swap_b32 {v}, {t}\nv_add_f32 {v}, {v}, {t}")

def round_bf16(a, dst, src):
    a(f"v_cvt_pk_bf16_f32 {dst}, {src}, {src}\nv_lshlrev_b32 {dst}, 16, {dst}")

vHL, vH1, vH2, vH3, vPA, vPA3, vPW, vPR = [f"v{i}" for i in range(62, 70)]
vTA = ["v70", "v71", "v72", "v85"]
GI = list(range(73, 84)); vEX = "v84"
LF = [88, 92]; R1F = [96, 100]; R2F = [104, 108]; R3F = 112
D1, D2, D3A, D3B = 116, 120, 124, 128
PSET = [dict(P=[132, 136], P3=140), dict(P=[144, 148], P3=152)]

def param_round(a, base, rnd):
    ar, ai, br, bi, cr, ci, ld, dk = [f"v{base+i}" for i in range(8)]
    for r in (ar, ai, br, bi, cr, ci, ld, dk): a(f"v_lshlrev_b32 {r}, 16, {r}")
    a(f"v_mul_f32 {ld}, {LOG2E}, {ld}\nv_exp_f32 {ld}, {ld}")
    round_bf16(a, ld, ld)
    a(f"""v_mul_f32 v156, {ld}, {ar}
    v_mul_f32 v156, {LOG2E}, v156
    v_mul_f32 v157, {ld}, {ai}
    v_mul_f32 v157, {INV2PI}, v157
    v_rndne_f32 v160, v157
    v_sub_f32 v157, v157, v160
    v_mul_f32 {br}, {ld}, {br}
    v_mul_f32 {bi}, {ld}, {bi}
    v_mul_f32 v158, {cr}, {br}
    v_fma_f32 v158, -{ci}, {bi}, v158
    v_mul_f32 v159, {cr}, {bi}
    v_fma_f32 v159, -{ci}, {br}, -v159
    v_mul_f32 v160, 0x45000000, v156
    v_mul_f32 v161, 0x45000000, v157
    v_fract_f32 v161, v161
    v_exp_f32 v160, v160
    v_sin_f32 v162, v161
    v_cos_f32 v161, v161""")
    a(f"""v_and_b32 v163, 31, v0
    v_lshlrev_b32 v163, 4, v163
    s_mul_i32 {sT[0]}, {sW}, {KCP}
    s_add_u32 {sT[0]}, {sT[0]}, {PB + (1024 if rnd else 0)}
    v_add_u32 v163, {sT[0]}, v163""")
    if rnd == 0:
        a("v_lshrrev_b32 v164, 5, v0\nv_lshl_add_u32 v163, v164, 9, v163")
    a(f"""ds_write_b128 v163, v[156:159]
    v_mul_f32 v161, v158, v161
    v_fmac_f32 v161, v159, v162
    v_mul_f32 v161, v160, v161""")
    row_sum32(a, "v161", "v162")
    a(f"s_cmp_eq_u32 {sW}, 0\ns_cselect_b64 vcc, -1, 0\nv_cndmask_b32 {dk}, 0, {dk}, vcc")
    if rnd == 0:
        a(f"v_readlane_b32 {sK[0]}, v161, 0\nv_readlane_b32 {sK[1]}, v161, 32\nv_readlane_b32 {sD[0]}, {dk}, 0\nv_readlane_b32 {sD[1]}, {dk}, 32")
    else:
        a(f"v_readlane_b32 {sK[2]}, v161, 0\nv_readlane_b32 {sD[2]}, {dk}, 0")

def kgen_reads(q, ps):
    return [f"ds_read_b128 {q4(ps['P'][0])}, {vPA} offset:{16*q}",
            f"ds_read_b128 {q4(ps['P'][1])}, {vPA} offset:{256+16*q}",
            f"ds_read_b64 {q2(ps['P3'])}, {vPA3} offset:{16*q}"]

def kgen_unit(a, q):
    ps = PSET[q & 1]
    a("s_waitcnt lgkmcnt(0)")
    if q < 3:
        for r in kgen_reads(q + 1, PSET[(q + 1) & 1]): a(r)
    evs = []
    T = 156
    for ks in range(2):
        p = ps["P"][ks]
        evs.append((vHL, p, False, LF[ks] + q, (p + 2, p + 3)))
        evs.append((vH1, p, False, R1F[ks] + q, None))
        evs.append((vH2, p, True, R2F[ks] + q, None))
    evs.append((vH3, ps["P3"], True, R3F + q, None))
    for grp in (evs[0:4], evs[4:7]):
        t = [(T + 4 * i, T + 4 * i + 1, T + 4 * i + 2, T + 4 * i + 3) for i in range(len(grp))]
        for (H, p, fr, d, w), (e, ph, s, u) in zip(grp, t): a(f"v_mul_f32 v{e}, {H}, v{p}\nv_mul_f32 v{ph}, {H}, v{p+1}")
        for (H, p, fr, d, w), (e, ph, s, u) in zip(grp, t):
            if fr: a(f"v_fract_f32 v{ph}, v{ph}")
        for (H, p, fr, d, w), (e, ph, s, u) in zip(grp, t): a(f"v_exp_f32 v{e}, v{e}\nv_sin_f32 v{s}, v{ph}\nv_cos_f32 v{ph}, v{ph}")
        for (H, p, fr, d, w), (e, ph, s, u) in zip(grp, t): a(f"v_mul_f32 v{s}, v{e}, v{s}\nv_mul_f32 v{ph}, v{e}, v{ph}")
        for (H, p, fr, d, w), (e, ph, s, u) in zip(grp, t):
            if w:
                a(f"""v_mul_f32 v{e}, v{w[0]}, v{ph}
                v_mul_f32 v{u}, v{w[1]}, v{ph}
                v_fmac_f32 v{e}, v{w[1]}, v{s}
                v_fma_f32 v{u}, -v{w[0]}, v{s}, v{u}""")
        for (H, p, fr, d, w), (e, ph, s, u) in zip(grp, t):
            a(f"v_cvt_pk_bf16_f32 v{d}, v{e}, v{u}" if w else f"v_cvt_pk_bf16_f32 v{d}, v{ph}, v{s}")

def kgen_finish(a):
    mf = "v_mfma_f32_16x16x32_bf16"
    a(f"""{mf} {q4(D3B)}, {q4(R3F)}, {q4(LF[1])}, 0
    {mf} {q4(D3A)}, {q4(R3F)}, {q4(LF[0])}, 0
    {mf} {q4(D1)}, {q4(R1F[0])}, {q4(LF[0])}, 0
    {mf} {q4(D2)}, {q4(R2F[0])}, {q4(LF[0])}, 0
    {mf} {q4(D1)}, {q4(R1F[1])}, {q4(LF[1])}, {q4(D1)}
    {mf} {q4(D2)}, {q4(R2F[1])}, {q4(LF[1])}, {q4(D2)}
    v_mov_b32 v160, {sK[0]}
    v_cmp_eq_u32 vcc, 0, v0
    v_mov_b32 v156, {sD[0]}
    v_cndmask_b32 v156, 0, v156, vcc
    ds_write_b128 {vPW}, v[160:163] offset:3072""")
    for r in range(4): a(f"v_permlane32_swap_b32 v{D3B+r}, v{164+r}")
    for r in range(4): a(f"v_add_f32 v{D3A+r}, v{D3A+r}, v{164+r}")
    a(f"""ds_write_b128 {vPW}, {q4(D3A)} offset:2048
    v_add_f32 v{D1}, v{D1}, v156
    ds_write_b128 {vPW}, {q4(D1)}
    ds_write_b128 {vPW}, {q4(D2)} offset:1024""")

def kgen_reduce(a):
    for c in range(4): a(f"ds_read_b128 {q4(156+4*c)}, {vPR} offset:{KCP*c}")
    a(f"v_add_u32 {vPW}, {KCS}, {vPW}\nv_add_u32 {vPR}, {KCS}, {vPR}")
    a(f"v_add_u32 {vPA}, 512, {vPA}\nv_add_u32 {vPA3}, 512, {vPA3}")
    a(f"s_mov_b32 {sK[0]}, {sK[1]}\ns_mov_b32 {sK[1]}, {sK[2]}\ns_mov_b32 {sD[0]}, {sD[1]}\ns_mov_b32 {sD[1]}, {sD[2]}")
    a("s_waitcnt lgkmcnt(2)")
    for r in range(4): a(f"v_add_f32 v{156+r}, v{156+r}, v{160+r}")
    a("s_waitcnt lgkmcnt(0)")
    for r in range(4): a(f"v_add_f32 v{164+r}, v{164+r}, v{168+r}")
    for r in range(4): a(f"v_add_f32 v{156+r}, v{156+r}, v{164+r}")
    for r in range(4): a(f"ds_write_b32 {vTA[r]}, v{156+r}")
    for r in range(4): a(f"v_add_u32 {vTA[r]}, {TBS}, {vTA[r]}")

def kgen_expand(a):
    V = {k: 156 + (3 - k) for k in range(3, -8, -1)}
    for n, k in enumerate(range(3, -8, -1)): a(f"ds_read_b32 v{V[k]}, v{GI[n]}")
    for n in range(11): a(f"v_add_u32 v{GI[n]}, {TBS}, v{GI[n]}")
    a("s_waitcnt lgkmcnt(0)")
    for c in range(4):
        o = 168 + 4 * c
        for i in range(4): a(f"v_cvt_pk_bf16_f32 v{o+i}, v{V[c-2*i]}, v{V[c-2*i-1]}")
        a(f"ds_write_b128 {vEX}, {q4(o)} offset:{KCP*c}")
    a(f"v_add_u32 {vEX}, {KCS}, {vEX}")

def helper_waves(a):
    a.label("L_helper")
    a.vq = []
    a(f"s_mov_b32 {sT[7]}, 4682\ns_and_b32 {sT[2]}, {sW}, 1\ns_mul_i32 {sT[3]}, {sT[2]}, {16*3456}\ns_lshl_b32 {sT[4]}, {sT0}, 5\ns_add_u32 {sT[3]}, {sT[3]}, {sT[4]}")
    for q in range(4):
        a(f"""v_add_u32 v8, {64*q}, v0
        v_mul_u32_u24 v9, {sT[7]}, v8
        v_lshrrev_b32 v9, 16, v9
        v_mul_u32_u24 v10, 14, v9
        v_sub_u32 v10, v8, v10
        v_mul_u32_u24 v9, 3456, v9
        v_lshl_add_u32 v9, v10, 4, v9
        v_add_u32 {vDW[q]}, {sT[3]}, v9""")
        if q: a(f"v_subrev_u32 {vDW[q]}, {1024*q}, {vDW[q]}")
    a(f"""v_lshrrev_b32 v8, 2, v0
    v_mul_u32_u24 v8, 1280, v8
    v_bfe_u32 v9, v0, 4, 2
    v_xor_b32 v9, v9, v0
    v_and_b32 v9, 3, v9
    v_lshl_add_u32 v8, v9, 4, v8
    s_lshl_b32 {sT[3]}, {sRB}, 7
    s_lshl_b32 {sT[4]}, {sW}, 5
    s_add_u32 {sT[3]}, {sT[3]}, {sT[4]}
    s_mul_i32 {sT[3]}, {sT[3]}, 1280
    v_add_u32 {vDX[0]}, {sT[3]}, v8
    v_add_u32 {vDX[1]}, {16*1280-1024}, {vDX[0]}
    s_mul_i32 {sWm}, {sT[2]}, 3584
    s_lshr_b32 {sT[4]}, {sW}, 1
    s_mul_i32 {sT[4]}, {sT[4]}, {UOFF}
    s_add_u32 {sWm}, {sWm}, {sT[4]}
    s_lshl_b32 {sXm}, {sW}, 11
    s_add_u32 {sXm}, {sXm}, {XR}
    s_mov_b32 s6, {sWm}
    s_mov_b32 s7, {sXm}
    s_mov_b32 {sWo_}, 0
    s_mov_b32 {sXo}, 0
    s_mov_b32 {sSL}, 0
    v_lshrrev_b32 v8, 5, v0
    s_lshl_b32 {sT[3]}, s2, 3
    s_lshl_b32 {sT[4]}, {sW}, 1
    s_add_u32 {sT[3]}, {sT[3]}, {sT[4]}
    v_add_u32 v45, {sT[3]}, v8
    v_mul_u32_u24 v9, 1280, v45
    v_and_b32 v10, 31, v0
    v_mul_u32_u24 v11, 40, v10
    v_add_u32 v7, v9, v11
    v_add_u32 v44, {sCH0}, v8
    v_lshlrev_b32 v43, 8, v44
    s_lshl_b32 {sT[4]}, {sW}, 6
    v_lshl_add_u32 v43, v10, 1, v43
    v_add_u32 v43, {sT[4]}, v43
    v_lshlrev_b32 v44, 1, v44
    s_add_u32 {sT[3]}, {sCH0}, 2
    s_min_u32 {sT[3]}, {sT[3]}, 639
    s_lshl_b32 {sT[5]}, {sT[3]}, 8
    s_add_u32 {sT[5]}, {sT[5]}, {sT[4]}
    v_lshlrev_b32 v42, 1, v10
    v_add_u32 v42, {sT[5]}, v42
    s_lshl_b32 {sT[3]}, {sT[3]}, 1
    v_mov_b32 v41, {sT[3]}""")
    wait_kernarg(a)
    a(f"""s_cmp_lt_u32 {sW}, 2
    s_cselect_b32 s48, {Plo(10)}, {Plo(11)}
    s_cselect_b32 s49, {Phi(10)}, {Phi(11)}
    s_and_b32 s49, s49, 0xffff
    s_mov_b32 s50, {640*3456}
    s_mov_b32 s51, 0x20000""")
    issue_stage(a, "s0")
    a.vm(f"buffer_load_dwordx4 v[8:11], v7, {SRD_X}, 0 offen", "ln")
    a.vm(f"buffer_load_dwordx4 v[12:15], v7, {SRD_X}, 0 offen offset:16", "ln")
    a.vm(f"buffer_load_dwordx2 v[16:17], v7, {SRD_X}, 0 offen offset:32", "ln")
    for rnd, (vo, vc) in enumerate((("v43", "v44"), ("v42", "v41"))):
        for i in range(6): a.vm(f"global_load_ushort v{46+8*rnd+i}, {vo}, {P(1+i)}", "par")
        a.vm(f"global_load_ushort v{52+8*rnd}, {vc}, {P(7)}", "par")
        a.vm(f"global_load_ushort v{53+8*rnd}, {vc}, {P(8)}", "par")
    for s in (1, 2, 3): issue_stage(a, f"s{s}")
    a(f"""v_mov_b32 v20, 0
    v_mov_b32 v21, 0
    v_mov_b32 v22, 0
    v_mov_b32 v23, 0
    v_lshlrev_b32 v24, 4, v0
    s_lshl_b32 {sT[3]}, {sW}, 11
    s_add_u32 {sT[3]}, {sT[3]}, {TB}
    v_add_u32 v24, {sT[3]}, v24
    ds_write_b128 v24, v[20:23]
    ds_write_b128 v24, v[20:23] offset:1024
    v_lshrrev_b32 v24, 1, v0
    v_min_u32 v24, 11, v24
    v_mul_u32_u24 v24, {KCP}, v24
    v_and_b32 v25, 1, v0
    v_lshl_add_u32 v24, v25, 4, v24
    v_add_u32 v24, {KC+4096}, v24
    ds_write_b128 v24, v[20:23]""")
    finish_tag(a)
    a.wait_vm("s0"); a("s_barrier")
    stamp(a, 1)
    tev_init(a, "h", "v254")
    a.wait_vm("ln")
    a(f"s_mov_b32 {sT[3]}, {ONES}\ns_mov_b32 {sT[4]}, 0xffff0000\nv_mov_b32 v38, 0\nv_mov_b32 v39, 0")
    for i in range(10): a(f"v_dot2c_f32_bf16 v{38+(i&1)}, {sT[3]}, v{8+i}")
    a("v_add_f32 v38, v38, v39")
    for i in range(10): a(f"v_lshlrev_b32 v{18+2*i}, 16, v{8+i}\nv_and_b32 v{19+2*i}, {sT[4]}, v{8+i}")
    row_sum32(a, "v38", "v39")
    a("v_mul_f32 v38, 0x3acccccd, v38\nv_mov_b32 v39, 0\nv_mov_b32 v40, 0")
    for i in range(10):
        a(f"v_sub_f32 v8, v{18+2*i}, v38\nv_sub_f32 v9, v{19+2*i}, v38\nv_fmac_f32 v39, v8, v8\nv_fmac_f32 v40, v9, v9")
    a("v_add_f32 v39, v39, v40")
    row_sum32(a, "v39", "v40")
    a("v_mul_f32 v39, 0x3acccccd, v39")
    round_bf16(a, "v39", "v39")
    a("v_add_f32 v39, 0x3727c5ac, v39")
    round_bf16(a, "v39", "v39")
    a("v_sqrt_f32 v39, v39")
    round_bf16(a, "v39", "v39")
    a("v_rcp_f32 v39, v39\nv_cvt_pk_bf16_f32 v40, v38, v38\nv_lshlrev_b32 v38, 16, v40")
    tev(a, "pro1"); a.wait_vm("s1"); a("s_barrier"); issue_stage(a, "s4"); tev(a, "B1")
    for i in range(20): a(f"v_sub_f32 v{18+i}, v{18+i}, v38")
    for i in range(10): a(f"v_cvt_pk_bf16_f32 v{8+i}, v{18+2*i}, v{19+2*i}")
    for i in range(10):
        a(f"v_lshlrev_b32 v{18+2*i}, 16, v{8+i}\nv_and_b32 v{19+2*i}, {sT[4]}, v{8+i}\nv_mul_f32 v{18+2*i}, v39, v{18+2*i}\nv_mul_f32 v{19+2*i}, v39, v{19+2*i}")
    for i in range(10): a(f"v_cvt_pk_bf16_f32 v{8+i}, v{18+2*i}, v{19+2*i}")
    a(f"""v_lshrrev_b32 v18, 5, v0
    s_lshl_b32 {sT[3]}, {sW}, 1
    v_add_u32 v18, {sT[3]}, v18
    v_mul_u32_u24 v18, {LNP}, v18
    v_and_b32 v19, 31, v0
    v_mul_u32_u24 v19, 40, v19
    v_add_u32 v18, v18, v19
    v_add_u32 v18, {LNS}, v18""")
    for i in range(5): a(f"ds_write_b64 v18, {q2(8+2*i)} offset:{8*i}")
    a(f"v_xor_b32 v40, 0x80008000, v40\nv_mul_f32 v41, v39, v39\nv_lshlrev_b32 v45, 3, v45\ns_mov_b32 {sT[3]}, {WS_STATS}")
    tev(a, "pro2"); a.wait_vm("s2", "lgkmcnt(0)"); a("s_barrier"); issue_stage(a, "s5"); tev(a, "B2")
    a(f"""v_bfe_u32 v18, v0, 2, 2
    v_mul_u32_u24 v18, {LNP}, v18
    v_lshrrev_b32 v19, 4, v0
    v_lshlrev_b32 v19, 5, v19
    v_and_b32 v20, 3, v0
    v_lshl_add_u32 v19, v20, 3, v19
    v_add_u32 v18, v18, v19
    s_lshl_b32 {sT[4]}, {sW}, 7
    s_add_u32 {sT[5]}, {sT[4]}, {LNS}
    v_add_u32 v18, {sT[5]}, v18
    s_cmp_lt_u32 {sW}, 2
    s_cselect_b32 {sT[5]}, 2, 1
    s_lshl_b32 {sT[5]}, {sT[5]}, 9
    v_add_u32 v19, {sT[5]}, v18
    ds_read_b64_tr_b16 v[8:9], v18
    ds_read_b64_tr_b16 v[10:11], v18 offset:{4*LNP}
    ds_read_b64_tr_b16 v[12:13], v18 offset:512
    ds_read_b64_tr_b16 v[14:15], v18 offset:{4*LNP+512}
    ds_read_b64_tr_b16 v[20:21], v19
    ds_read_b64_tr_b16 v[22:23], v19 offset:{4*LNP}
    s_mov_b32 exec_lo, 1
    s_mov_b32 exec_hi, 1""")
    a.vm(f"buffer_store_dwordx2 v[40:41], v45, {SRD_WS}, {sT[3]} offen sc1", "st")
    a(f"""s_mov_b64 exec, -1
    s_mul_i32 {sT[3]}, s2, 10240
    s_lshl_b32 {sT[4]}, {sW}, 10
    s_add_u32 {sT[3]}, {sT[3]}, {sT[4]}
    s_add_u32 {sT[3]}, {sT[3]}, {WS_XNT}
    s_lshl_b32 {sT[5]}, {sT[5]}, 3
    s_add_u32 {sT[5]}, {sT[5]}, {sT[3]}
    s_add_u32 {sT[4]}, {sT[3]}, 4096
    v_lshlrev_b32 v18, 4, v0
    s_waitcnt lgkmcnt(0)""")
    a.vm(f"buffer_store_dwordx4 v[8:11], v18, {SRD_WS}, {sT[3]} offen sc1", "st")
    a.vm(f"buffer_store_dwordx4 v[12:15], v18, {SRD_WS}, {sT[4]} offen sc1", "st")
    a.vm(f"buffer_store_dwordx4 v[20:23], v18, {SRD_WS}, {sT[5]} offen sc1", "st")
    param_round(a, 46, 0)
    tev(a, "pro3"); a.wait_vm("s3"); a("s_barrier"); issue_stage(a, "s6"); tev(a, "B3")
    param_round(a, 54, 1)
    a(f"""v_and_b32 v8, 15, v0
    v_lshrrev_b32 v9, 4, v0
    v_lshlrev_b32 v10, 3, v8
    v_cvt_f32_u32 {vHL}, v10
    v_lshrrev_b32 v11, 3, v8
    v_and_b32 v12, 7, v8
    v_lshl_add_u32 v13, v11, 7, v12
    v_cvt_f32_u32 {vH1}, v13
    v_lshlrev_b32 v13, 7, v12
    v_add_u32 v13, 1024, v13
    v_cvt_f32_u32 {vH3}, v13
    v_lshrrev_b32 v13, 2, v12
    v_lshlrev_b32 v13, 7, v13
    v_and_b32 v14, 3, v12
    v_lshl_add_u32 v13, v14, 1, v13
    v_add_u32 v13, 256, v13
    v_lshrrev_b32 v14, 1, v12
    v_lshlrev_b32 v14, 7, v14
    v_and_b32 v15, 1, v12
    v_lshl_add_u32 v14, v15, 2, v14
    v_add_u32 v14, 512, v14
    v_cmp_lt_u32 vcc, 7, v8
    v_cndmask_b32 v13, v13, v14, vcc
    v_cvt_f32_u32 {vH2}, v13
    s_mul_i32 {sT[3]}, {sW}, {KCP}
    s_add_u32 {sT[3]}, {sT[3]}, {PB}
    v_lshlrev_b32 v13, 6, v9
    v_add_u32 {vPA}, {sT[3]}, v13
    v_lshl_add_u32 {vPA3}, v11, 8, {vPA}
    v_lshlrev_b32 v13, 4, v0
    s_mul_i32 {sT[3]}, {sW}, {KCP}
    s_add_u32 {sT[3]}, {sT[3]}, {KC}
    v_add_u32 {vPW}, {sT[3]}, v13
    s_lshl_b32 {sT[3]}, {sW}, 10
    s_add_u32 {sT[3]}, {sT[3]}, {KC}
    v_add_u32 {vPR}, {sT[3]}, v13
    v_lshrrev_b32 v11, 1, v9
    v_and_b32 v12, 1, v9
    v_lshlrev_b32 v13, 9, v11
    v_lshl_add_u32 v13, v12, 4, v13
    v_lshl_add_u32 v16, v8, 5, v13
    v_lshlrev_b32 v13, 8, v12
    v_lshl_add_u32 v14, v8, 4, v13
    v_add_u32 v14, {4*256}, v14
    v_lshl_add_u32 v15, v8, 3, v13
    v_add_u32 v15, {4*384}, v15
    v_cmp_lt_u32 vcc, 31, v0
    v_cndmask_b32 v17, v14, v15, vcc
    v_add_u32 v14, 8, v14
    v_add_u32 v15, 128, v15
    v_cndmask_b32 v18, v14, v15, vcc
    v_lshl_add_u32 v19, v8, 2, v13
    v_add_u32 v19, {4*512}, v19
    v_mov_b32 v20, {4*641}
    v_cndmask_b32 v21, v19, v20, vcc
    v_mov_b32 v22, 64
    v_cndmask_b32 v22, v22, 0, vcc
    s_cmp_eq_u32 {sW}, 1
    s_cselect_b64 vcc, -1, 0
    v_cndmask_b32 v16, v16, v17, vcc
    v_mov_b32 v23, 4
    v_cndmask_b32 v24, 8, v18, vcc
    v_sub_u32 v25, v18, v17
    v_cndmask_b32 v24, 8, v25, vcc
    s_cmp_eq_u32 {sW}, 2
    s_cselect_b64 vcc, -1, 0
    v_cndmask_b32 v16, v16, v21, vcc
    v_cndmask_b32 v23, v23, v22, vcc
    v_lshlrev_b32 v25, 1, v22
    v_cndmask_b32 v24, v24, v25, vcc
    s_cmp_eq_u32 {sW}, 3
    s_cselect_b64 vcc, -1, 0
    v_mov_b32 v25, {4*640}
    v_cndmask_b32 v16, v16, v25, vcc
    v_add_u32 {vTA[0]}, {TB+16}, v16
    v_add_u32 {vTA[1]}, {vTA[0]}, v23
    v_add_u32 {vTA[2]}, {vTA[0]}, v24
    v_add_u32 {vTA[3]}, {vTA[2]}, v23""")
    tev(a, "pro4"); a.wait_vm("s4"); a("s_barrier"); issue_stage(a, "s7"); tev(a, "B4")
    a(f"""s_lshl_b32 {sT[3]}, {sW}, 6
    v_add_u32 v8, {sT[3]}, v0
    v_lshlrev_b32 {vEX}, 4, v8
    v_add_u32 {vEX}, {KC}, {vEX}
    v_lshlrev_b32 v8, 3, v8
    v_sub_u32 v8, 2047, v8
    s_mov_b32 {sT[3]}, 0x4280""")
    for n in range(11):
        a(f"""v_max_i32 v10, 0, v8
        v_cvt_f32_i32 v10, v10
        v_cvt_pk_bf16_f32 v10, v10, v10
        v_and_b32 v10, 0xffff, v10
        v_subrev_u32 v10, {sT[3]}, v10
        v_min_i32 v11, 128, v8
        v_max_i32 v10, v10, v11
        v_lshlrev_b32 v10, 2, v10
        v_add_u32 v{GI[n]}, {TB+16}, v10
        v_subrev_u32 v8, 1, v8""")
    a.wait_vm("s5"); a.wait_vm("st") if "st" in a.vq else None
    a("s_barrier")
    a(f"s_cmp_lg_u32 {sW}, 0\ns_cbranch_scc1 L_noflag")
    a(f"s_lshl_b32 {sT[3]}, s2, 2\ns_add_u32 {sT[3]}, {sT[3]}, {WS_FLAGA}\nv_mov_b32 v8, {sTAG}\nv_mov_b32 v9, 0\ns_mov_b64 exec, 1")
    a(f"buffer_store_dword v8, v9, {SRD_WS}, {sT[3]} offen sc0 sc1\ns_mov_b64 exec, -1")
    a.label("L_noflag")
    issue_stage(a, "s8")
    stamp(a, 2)
    tev(a, "B5")
    a(f"s_mov_b32 {sIT}, 0")
    a.label("L_chan")
    for r in kgen_reads(0, PSET[0]): a(r)
    def site(k, sync=None, own=False):
        if own:
            spin_lds(a, sync, f"s_lshl_b32 {sT[1]}, {sIT}, 2\ns_add_u32 {sT[1]}, {sT[1]}, 4"); tev(a, "spin"); return
        S = a.newlabel("nodut"); E = a.newlabel("dut")
        a(f"s_cmp_ge_u32 {sIT}, 2\ns_cbranch_scc1 {S}")
        duty(a, 12, True, lgkm=sync is not None, name=str(k))
        if sync is not None:
            a(f"s_branch {E}"); a.label(S); spin_lds(a, sync); a.label(E)
        else: a.label(S)
    for q in range(4):
        if not Opt.nokgen: kgen_unit(a, q)
        if q < 3: site(q)
    if not Opt.nofin: kgen_finish(a)
    site(3, sync=0)
    if not Opt.nofin:
        kgen_reduce(a)
        site(4, sync=2, own=True)
        kgen_expand(a)
    site(5)
    a(f"s_add_u32 {sIT}, {sIT}, 1\ns_cmp_lt_u32 {sIT}, 2\ns_cbranch_scc1 L_chan\ns_cmp_eq_u32 {sIT}, 3\ns_cbranch_scc1 L_conv")
    stamp(a, 3)
    a.vq = ["s16"] * 6 + ["s17"] * 6 + ["s18"] * 6
    a("v_lshlrev_b32 v12, 4, v0")
    a(f"s_mov_b32 {sT[3]}, {WS_FLAGA}")
    poll = f"buffer_load_dwordx4 v[8:11], v12, {SRD_WS}, {sT[3]} offen sc0 sc1"
    chk = "\n".join(f"v_xor_b32 v{8+i}, {sTAG}, v{8+i}" for i in range(4)) + "\nv_or3_b32 v8, v8, v9, v10\nv_or_b32 v8, v8, v11\nv_cmp_ne_u32 vcc, 0, v8"
    a.vm(poll, "poll")
    a.wait_vm("s16"); a("s_barrier"); issue_stage(a, "s19")
    a.wait_vm("poll"); a(chk); a("s_cbranch_vccz L_aok")
    keep = list(a.vq)
    spin_flags(a, poll, chk, "polla")
    a.vq = keep
    a.label("L_aok")
    tev(a, "polled")
    a("s_barrier")
    a(f"s_cmp_lg_u32 s2, 0\ns_cbranch_scc1 L_noep\ns_cmp_lg_u32 {sW}, 0\ns_cbranch_scc1 L_noep")
    a(f"s_mov_b32 {sT[3]}, {WS_EPOCH}\nv_mov_b32 v8, {sTAG}\nv_mov_b32 v9, 0\ns_mov_b64 exec, 1")
    a(f"buffer_store_dword v8, v9, {SRD_WS}, {sT[3]} offen sc0 sc1\ns_mov_b64 exec, -1")
    a.label("L_noep")
    a(f"""v_mov_b32 v20, 0
    v_mov_b32 v21, 0
    v_mov_b32 v22, 0
    v_mov_b32 v23, 0
    v_and_b32 v24, 31, v0
    v_lshlrev_b32 v24, 4, v24
    s_min_u32 {sT[3]}, {sW}, 2
    s_mul_i32 {sT[3]}, {sT[3]}, {XSS}
    s_add_u32 {sT[3]}, {sT[3]}, {XS}
    v_add_u32 v24, {sT[3]}, v24
    ds_write_b128 v24, v[20:23]
    s_lshl_b32 {sT[3]}, {sW}, 6
    v_add_u32 v8, {sT[3]}, v0
    v_mul_u32_u24 v8, 10240, v8
    s_lshl_b32 {sT[4]}, {sW}, 10
    s_add_u32 {sT[4]}, {sT[4]}, {XS+512}""")
    for j in range(3):
        a(f"""s_add_u32 {sT[3]}, {sCH0}, {j}
        s_min_u32 {sT[3]}, {sT[3]}, 639
        s_lshl_b32 {sT[3]}, {sT[3]}, 4
        s_add_u32 {sT[3]}, {sT[3]}, {WS_XNT}
        s_add_u32 m0, {sT[4]}, {j*XSS}""")
        a.vm(f"buffer_load_dwordx4 v8, {SRD_WS}, {sT[3]} offen sc1 lds", "xs")
    a("s_waitcnt vmcnt(9)\ns_barrier")
    a("s_waitcnt vmcnt(3)\ns_barrier")
    a("s_barrier")
    stamp(a, 4)
    tev(a, "B20")
    a(f"s_cmp_eq_u32 {sNCH}, 3\ns_cbranch_scc1 L_chan")
    a.label("L_conv")
    a("s_waitcnt vmcnt(0)")
    spin_lds(a, 1)
    stamp(a, 5)
    tev(a, "convstart")
    a(f"s_cmp_ge_u32 {sW}, {sNCH}\ns_cbranch_scc1 L_hdone")
    AS = [64, 96]; BS = [128, 160]; Y0 = 192
    a(f"""v_and_b32 v10, 15, v0
    v_lshrrev_b32 v11, 4, v0
    v_and_b32 v12, 3, v10
    v_sub_u32 v13, v10, v12
    v_lshlrev_b32 v14, 3, v11
    v_sub_u32 v13, v14, v13
    v_add_u32 v13, 236, v13
    v_lshlrev_b32 v13, 1, v13
    v_mul_u32_u24 v12, {KCP}, v12
    s_mul_i32 {sT[3]}, {sW}, {KCS}
    s_add_u32 {sT[3]}, {sT[3]}, {KC}
    v_add3_u32 v8, v12, v13, {sT[3]}
    v_lshlrev_b32 v12, 5, v10
    v_lshl_add_u32 v12, v11, 4, v12
    s_mul_i32 {sT[3]}, {sW}, {XSS}
    s_add_u32 {sT[3]}, {sT[3]}, {XS+480}
    v_add_u32 v9, {sT[3]}, v12""")
    for r in range(32): a(f"v_mov_b32 v{Y0+r}, 0")
    lg = Lgkm(a)
    def creads(st):
        out = []
        for i in range(8):
            out.append(((st, "B", i), f"ds_read_b128 {q4(BS[st]+4*i)}, v9 offset:{512*i}"))
            out.append(((st, "A", i), f"ds_read_b64 {q2(AS[st]+4*i)}, v8 offset:{512*(7-i)}"))
            out.append(((st, "A", i), f"ds_read_b64 {q2(AS[st]+4*i+2)}, v8 offset:{512*(7-i)+8}"))
        return out
    pairs = sorted([(p, q) for p in range(8) for q in range(8) if p + q <= 7], key=lambda t: (max(t), t))
    for t, txt in creads(0):
        lg.op(txt, t)
        if len(lg.q) == 12: lg.wait(lg.q[3])
    lg.wait_all()
    a(f"v_subrev_u32 v8, 64, v8\nv_subrev_u32 v9, 64, v9\ns_mov_b32 {sIT}, 4")
    a(".p2align 6"); a.label("L_cv")
    for st in range(2):
        rd = creads(1 - st)
        for n, (p, q) in enumerate(pairs):
            a(f"v_mfma_f32_16x16x32_bf16 {q4(Y0+4*(p+q))}, {q4(AS[st]+4*p)}, {q4(BS[st]+4*q)}, {q4(Y0+4*(p+q))}")
            if rd:
                if len(lg.q) >= 12: lg.wait(lg.q[3])
                t, txt = rd.pop(0); lg.op(txt, t)
        lg.wait_all()
        a("v_subrev_u32 v8, 64, v8\nv_subrev_u32 v9, 64, v9")
    a(f"s_sub_u32 {sIT}, {sIT}, 1\ns_cmp_lg_u32 {sIT}, 0\ns_cbranch_scc1 L_cv")
    stamp(a, 6)
    tev(a, "convdone")
    a(f"""s_add_u32 {sT[3]}, {sCH0}, {sW}
    s_lshl_b32 {sT[4]}, {sT[3]}, 12
    s_add_u32 {sT[4]}, {sT[4]}, {WS_Y}
    v_bfe_u32 v12, v0, 4, 1
    v_lshlrev_b32 v12, 9, v12
    v_lshl_add_u32 v12, v10, 5, v12
    v_lshrrev_b32 v13, 5, v0
    v_lshl_add_u32 v12, v13, 4, v12""")
    for u in range(4):
        o = 224 + 4 * u; b = Y0 + 8 * u
        for i in range(4): a(f"v_cvt_pk_bf16_f32 v{o+i}, v{b+2*i}, v{b+2*i+1}")
        a(f"v_permlane16_swap_b32 v{o}, v{o+2}\nv_permlane16_swap_b32 v{o+1}, v{o+3}")
        a(f"buffer_store_dwordx4 {q4(o)}, v12, {SRD_WS}, {sT[4]} offen offset:{1024*u} sc1")
    a(f"""s_lshl_b32 {sT[3]}, {sT[3]}, 2
    s_add_u32 {sT[3]}, {sT[3]}, {WS_FLAGC}
    v_mov_b32 v8, {sTAG}
    v_mov_b32 v9, 0
    s_waitcnt vmcnt(0)
    s_mov_b64 exec, 1
    buffer_store_dword v8, v9, {SRD_WS}, {sT[3]} offen sc0 sc1
    s_mov_b64 exec, -1""")
    stamp(a, 7)
    tev(a, "flagC")
    a.label("L_hdone")
    if Opt.debug:
        dump_stamps(a, 8); a("s_waitcnt vmcnt(0)")
    a("s_endpgm")

def build():
    a = Asm()
    common(a)
    gemm_waves(a)
    helper_waves(a)
    a.label("L_exit"); a("s_endpgm")
    lines, nops = pad_hazards(a.lines)
    head = f"""; Fused LayerNorm + S4 convolution + ReGLU MLP for gfx950: one launch, 256 workgroups of 8 waves.
; Waves 0-3 run the two GEMMs, waves 4-7 stage operands, normalise, build the SSM kernel and convolve.
; @launch grid=(256,1,1) block=(512,1,1) lds={LDS_SIZE}
.amdgcn_target "amdgcn-amd-amdhsa--gfx950"
.text
.globl {NAME}_kernel
.p2align 8
.type {NAME}_kernel,@function
{NAME}_kernel:
"""
    tail = f"""
.section .rodata,"a"
.p2align 6
.amdhsa_kernel {NAME}_kernel
  .amdhsa_next_free_vgpr 256
  .amdhsa_next_free_sgpr 102
  .amdhsa_accum_offset 256
  .amdhsa_group_segment_fixed_size 0
  .amdhsa_kernarg_size 128
  .amdhsa_user_sgpr_count 2
  .amdhsa_user_sgpr_kernarg_segment_ptr 1
  .amdhsa_system_sgpr_workgroup_id_x 1
  .amdhsa_float_denorm_mode_32 3
.end_amdhsa_kernel
"""
    body = "\n".join(l if l.endswith(":") or l.startswith(".") else "    " + l for l in lines)
    return head + body + tail, nops

if __name__ == "__main__":
    out = sys.argv[1]
    for o in sys.argv[2:]: setattr(Opt, o, True)
    src, nops = build()
    open(out, "w").write(src)
    if Opt.prof:
        import json; json.dump(EVN, open(out + ".ev.json", "w"))
    print("written", out, "lines", src.count("\n"), "nop states", nops)
```
